```python
import torch

def _softmax(x, axis=-1):
    return torch.softmax(x, dim=axis)
def _gelu(x):
    return torch.nn.functional.gelu(x, approximate="tanh")
def _silu(x):
    return torch.nn.functional.silu(x)
def _sigmoid(x):
    return torch.sigmoid(x)
def _layernorm(x, axis=-1, eps=1e-5):
    m = x.mean(dim=axis, keepdim=True)
    v = x.var(dim=axis, keepdim=True, unbiased=False)
    return (x - m) / torch.sqrt(v + eps)
def _scatter_add(tgt, idx, src, axis=0):
    return tgt.clone().index_add_(axis, idx, src)
def _segment_sum(src, seg, n):
    out = torch.zeros((n,) + src.shape[1:], dtype=src.dtype)
    return out.index_add_(0, seg, src)
def _pad(x, pw):
    flat = tuple(v for pair in reversed(pw) for v in pair)
    return torch.nn.functional.pad(x, flat)

kernel_name = 'sequential_preLN__ssm_conv_s4d__mixer_token_mlp__prompt'

def setup_inputs():

    _w = (lambda a: (lambda t: t.to(torch.bfloat16) if t.is_floating_point() else t)(torch.as_tensor(a)))
    def _A_setup():
        Bsz, L, D, N = 1, 2048, 640, 192
        return {
            "u": _w((lambda *s: torch.randn(*s, dtype=torch.bfloat16) * 0.05)(Bsz, L, D)),
            "log_A_real": _w((lambda *s: torch.randn(*s, dtype=torch.bfloat16) * 6.4)(D, N) * 0.5),
            "A_imag": _w((lambda *s: torch.randn(*s, dtype=torch.bfloat16) * 0.05)(D, N) * 3.14),
            "C_real": _w((lambda *s: torch.randn(*s, dtype=torch.bfloat16) * 0.05)(D, N) / N ** 0.5),
            "C_imag": _w((lambda *s: torch.randn(*s, dtype=torch.bfloat16) * 0.05)(D, N) / N ** 0.5),
            "log_dt": _w((lambda *s: torch.randn(*s, dtype=torch.bfloat16) * 0.05)(D) * 0.5 - 4.0),
            "D_skip": _w((lambda *s: torch.randn(*s, dtype=torch.bfloat16) * 0.05)(D)),
        }
    _A_in = _A_setup()

    def _B_setup():
        B, S, D, F = 1, 2048, 640, 1536
        return {
            "x": _w((lambda *s: torch.randn(*s, dtype=torch.bfloat16) * 0.05)(B, S, D)),
            "w1": _w((lambda *s: torch.randn(*s, dtype=torch.bfloat16) * 0.4)(S, F) * (S ** -0.5)),
            "b1": _w((lambda *s: torch.randn(*s, dtype=torch.bfloat16) * 12.8)(F) * 0.02),
            "w2": _w((lambda *s: torch.randn(*s, dtype=torch.bfloat16) * 0.2)(F, S) * (F ** -0.5)),
            "b2": _w((lambda *s: torch.randn(*s, dtype=torch.bfloat16) * 3.2)(S) * 0.02),
        }
    _B_in = _B_setup()

    return {
        "A_u": _A_in["u"],
        "A_log_A_real": _A_in["log_A_real"],
        "A_A_imag": _A_in["A_imag"],
        "A_C_real": _A_in["C_real"],
        "A_C_imag": _A_in["C_imag"],
        "A_log_dt": _A_in["log_dt"],
        "A_D_skip": _A_in["D_skip"],
        "B_x": _B_in["x"],
        "B_w1": _B_in["w1"],
        "B_b1": _B_in["b1"],
        "B_w2": _B_in["w2"],
        "B_b2": _B_in["b2"],
    }

def reference(A_u, A_log_A_real, A_A_imag, A_C_real, A_C_imag, A_log_dt, A_D_skip, B_x, B_w1, B_b1, B_w2, B_b2):
    def _A_ref(u, log_A_real, A_imag, C_real, C_imag, log_dt, D_skip):
        L = u.shape[1]
        dt = torch.exp(log_dt)
        A = -torch.exp(log_A_real) + 1j * A_imag
        C = (C_real + 1j * C_imag) * dt[:, None]
        pos = (lambda x, dt: x.to(dt))(torch.arange(L), log_dt.dtype)
        P = torch.exp((A * dt[:, None])[:, :, None] * pos[None, None, :])
        K = 2.0 * torch.einsum("dn,dnl->dl", C, P).real
        L2 = 2 * L
        u_t = (lambda x, *d: x.permute(*d))(u, 0, 2, 1)
        Kf = (lambda x, *a, **k: torch.fft.rfft(x.float(), *a, **k))(K, L2)
        Uf = (lambda x, *a, **k: torch.fft.rfft(x.float(), *a, **k))(u_t, L2)
        y = (lambda x, *a, **k: torch.fft.irfft(x, *a, **k).to(torch.bfloat16))(Uf * Kf[None, :, :], L2)[:, :, :L]
        y = (lambda x, *d: x.permute(*d))(y, 0, 2, 1)
        return y + u * D_skip[None, None, :]

    def _B_ref(x, w1, b1, w2, b2):
        B, S, D = x.shape
        h = _layernorm(x, axis=-1)
        u = torch.einsum("bsd,sf->bdf", h, w1) + b1
        u = _gelu(u)
        y = torch.einsum("bdf,fs->bds", u, w2) + b2
        return (lambda x, *d: x.permute(*d))(y, 0, 2, 1)

    x = A_u
    h = x + _A_ref(_layernorm(x, axis=-1), A_log_A_real, A_A_imag, A_C_real, A_C_imag, A_log_dt, A_D_skip)
    h2 = h + _B_ref(_layernorm(h, axis=-1), B_w1, B_b1, B_w2, B_b2)
    return h2
```

```python
LOG2E = 1.4426950408889634
INV2PI = 0.15915494309189535

import struct
def f32bits(x):
    return struct.unpack('<I', struct.pack('<f', x))[0]
def flit(x):
    return f"0x{f32bits(x):08x}"

KA = dict(x=0, lar=8, aim=16, cre=24, cim=32, ldt=40, dsk=48, bx=56, w1=64, b1=72, w2=80, b2=88, out=96, dbg=104, ws=112)

WS_UT  = 0x000000
WS_SSM = 0x280000
WS_H   = 0x500000
WS_HLN = 0x780000
WS_GT  = 0xA00000
WS_KT  = 0xC00000
MAT_BYTES = 2048 * 640 * 2
GT_BYTES = 1536 * 640 * 2
KT_CH = 16640
KT_BYTES = 640 * KT_CH

class Kern:
    def __init__(s, name):
        s.name = name; s.L = []; s.uid = 0
    def e(s, txt):
        s.L.append("    " + txt)
    def c(s, txt):
        s.L.append("    ; " + txt)
    def lab(s, l):
        s.L.append(l + ":")
    def newlab(s, base):
        s.uid += 1
        return f"L_{s.name[:6]}_{base}_{s.uid}"
    def nop(s, n):
        while n > 0:
            k = min(n, 16); s.e(f"s_nop {k-1}"); n -= k
    def srd(s, dst, lo, hi, off, size):
        if off:
            s.e(f"s_add_u32 s{dst}, s{lo}, {off}")
            s.e(f"s_addc_u32 s{dst+1}, s{hi}, 0")
        else:
            s.e(f"s_mov_b32 s{dst}, s{lo}")
            s.e(f"s_mov_b32 s{dst+1}, s{hi}")
        s.e(f"s_mov_b32 s{dst+2}, {size}")
        s.e(f"s_mov_b32 s{dst+3}, 0x00020000")
    def wave_sum(s, v, sdst):
        for mod in ["quad_perm:[1,0,3,2] row_mask:0xf bank_mask:0xf", "quad_perm:[2,3,0,1] row_mask:0xf bank_mask:0xf",
                    "row_half_mirror row_mask:0xf bank_mask:0xf", "row_mirror row_mask:0xf bank_mask:0xf",
                    "row_bcast:15 row_mask:0xa bank_mask:0xf", "row_bcast:31 row_mask:0xc bank_mask:0xf"]:
            s.nop(2)
            s.e(f"v_add_f32_dpp v{v}, v{v}, v{v} {mod}")
        s.nop(1)
        s.e(f"v_readlane_b32 s{sdst}, v{v}, 63")
        s.nop(2)
    def text(s, vgpr, sgpr):
        acc = (vgpr + 3) // 4 * 4
        hdr = [f".globl {s.name}", ".p2align 8", f".type {s.name},@function", f"{s.name}:"]
        body = hdr + s.L
        desc = [f".amdhsa_kernel {s.name}",
                f"  .amdhsa_next_free_vgpr {vgpr}",
                f"  .amdhsa_next_free_sgpr {sgpr}",
                f"  .amdhsa_accum_offset {acc}",
                "  .amdhsa_group_segment_fixed_size 0",
                "  .amdhsa_kernarg_size 120",
                "  .amdhsa_user_sgpr_count 2",
                "  .amdhsa_user_sgpr_kernarg_segment_ptr 1",
                "  .amdhsa_system_sgpr_workgroup_id_x 1",
                ".end_amdhsa_kernel"]
        return "\n".join(body), "\n".join(desc)
```

```python
from gen_common import *

STAGE = 20480
LDS = 2 * STAGE
D = 8

def gemm_core(k, nkb, lda, ldb, sA, sB, srdA, srdB):
    k.e("v_lshrrev_b32 v3, 3, v0")
    k.e("v_and_b32 v4, 7, v0")
    k.e("v_lshlrev_b32 v5, 4, v4")
    k.e(f"v_mul_u32_u24 v6, {lda}, v3")
    k.e("v_add_u32 v6, v6, v5")
    k.e(f"v_add_u32 v7, {32*lda}, v6")
    k.e(f"v_mul_u32_u24 v8, {ldb}, v3")
    k.e("v_add_u32 v8, v8, v5")
    k.e(f"v_add_u32 v9, {32*ldb}, v8")
    k.e("v_mul_u32_u24 v10, 320, v3")
    k.e("v_add_u32 v10, v10, v5")
    k.e("v_and_b32 v1, 63, v0")
    k.e("v_lshrrev_b32 v2, 6, v0")
    k.e("v_lshrrev_b32 v3, 5, v1")
    k.e("v_lshlrev_b32 v3, 3, v3")
    k.e("v_and_b32 v4, 15, v1")
    k.e("v_lshrrev_b32 v4, 2, v4")
    k.e("v_add_u32 v3, v3, v4")
    k.e("v_mul_u32_u24 v3, 320, v3")
    k.e("v_lshrrev_b32 v4, 4, v1")
    k.e("v_and_b32 v4, 1, v4")
    k.e("v_lshlrev_b32 v4, 5, v4")
    k.e("v_and_b32 v5, 3, v1")
    k.e("v_lshlrev_b32 v5, 3, v5")
    k.e("v_add_u32 v4, v4, v5")
    k.e("v_add_u32 v3, v3, v4")
    k.e("v_and_b32 v4, 1, v2")
    k.e("v_lshlrev_b32 v4, 6, v4")
    k.e("v_add_u32 v11, v3, v4")
    k.e("v_lshrrev_b32 v4, 1, v2")
    k.e("v_lshlrev_b32 v4, 6, v4")
    k.e("v_add_u32 v12, v3, v4")
    k.e("v_add_u32 v12, 128, v12")
    ACC = 16
    for r in range(16):
        k.e(f"v_mov_b32 v{ACC+r}, 0")
    FA, FB = 32, 48
    SETS = [64 + 16 * i for i in range(D)]
    def loads(kb):
        b = SETS[kb % D]
        k.e(f"buffer_load_dwordx4 v[{b}:{b+3}], v6, s[{srdA}:{srdA+3}], s{sA} offen")
        k.e(f"buffer_load_dwordx4 v[{b+4}:{b+7}], v7, s[{srdA}:{srdA+3}], s{sA} offen")
        k.e(f"buffer_load_dwordx4 v[{b+8}:{b+11}], v8, s[{srdB}:{srdB+3}], s{sB} offen")
        k.e(f"buffer_load_dwordx4 v[{b+12}:{b+15}], v9, s[{srdB}:{srdB+3}], s{sB} offen")
        k.e(f"s_add_u32 s{sA}, s{sA}, {64*lda}")
        k.e(f"s_add_u32 s{sB}, s{sB}, {64*ldb}")
    def stage_write(kb):
        b = SETS[kb % D]; st = (kb & 1) * STAGE
        k.e(f"ds_write_b128 v10, v[{b}:{b+3}] offset:{st}")
        k.e(f"ds_write_b128 v10, v[{b+4}:{b+7}] offset:{st + 10240}")
        k.e(f"ds_write_b128 v10, v[{b+8}:{b+11}] offset:{st + 128}")
        k.e(f"ds_write_b128 v10, v[{b+12}:{b+15}] offset:{st + 10240 + 128}")
    issued = 0
    for kb in range(min(D, nkb)):
        loads(kb); issued += 1
    k.e(f"s_waitcnt vmcnt({4*(issued-1)})")
    stage_write(0)
    k.e("s_waitcnt lgkmcnt(0)")
    if issued < nkb:
        loads(issued); issued += 1
    k.e("s_barrier")
    for kb in range(nkb):
        st = (kb & 1) * STAGE
        for kk in range(4):
            k.e(f"ds_read_b64_tr_b16 v[{FA+4*kk}:{FA+4*kk+1}], v11 offset:{st + 5120*kk}")
            k.e(f"ds_read_b64_tr_b16 v[{FA+4*kk+2}:{FA+4*kk+3}], v11 offset:{st + 5120*kk + 1280}")
            k.e(f"ds_read_b64_tr_b16 v[{FB+4*kk}:{FB+4*kk+1}], v12 offset:{st + 5120*kk}")
            k.e(f"ds_read_b64_tr_b16 v[{FB+4*kk+2}:{FB+4*kk+3}], v12 offset:{st + 5120*kk + 1280}")
        for kk in range(4):
            k.e(f"s_waitcnt lgkmcnt({12-4*kk})")
            k.e(f"v_mfma_f32_32x32x16_bf16 v[{ACC}:{ACC+15}], v[{FA+4*kk}:{FA+4*kk+3}], v[{FB+4*kk}:{FB+4*kk+3}], v[{ACC}:{ACC+15}]")
        if kb + 1 < nkb:
            younger = issued - (kb + 2)
            k.e(f"s_waitcnt vmcnt({4*younger})")
            stage_write(kb + 1)
            k.e("s_waitcnt lgkmcnt(0)")
            if issued < nkb:
                loads(issued); issued += 1
            k.e("s_barrier")
    k.nop(16)
    return ACC

def bf16r(k, r, t):
    k.e(f"v_cvt_pk_bf16_f32 v{t}, v{r}, v{r}")
    k.e(f"v_lshlrev_b32 v{r}, 16, v{t}")

def gen_k4():
    k = Kern("k4_gemm1_kernel")
    END = "L_k4_end"
    k.e("s_cmp_ge_u32 s2, 240")
    k.e(f"s_cbranch_scc1 {END}")
    k.e(f"s_load_dwordx2 s[4:5], s[0:1], {KA['ws']}")
    k.e(f"s_load_dwordx2 s[6:7], s[0:1], {KA['w1']}")
    k.e(f"s_load_dwordx2 s[24:25], s[0:1], {KA['b1']}")
    k.e("s_and_b32 s26, s2, 7")
    k.e("s_lshr_b32 s27, s2, 3")
    k.e("s_mul_i32 s28, s27, 171")
    k.e("s_lshr_b32 s28, s28, 9")
    k.e("s_mul_i32 s29, s28, 3")
    k.e("s_sub_u32 s29, s27, s29")
    k.e("s_mul_i32 s30, s26, 3")
    k.e("s_add_u32 s29, s29, s30")
    k.e("s_lshl_b32 s32, s28, 7")
    k.e("s_lshl_b32 s33, s29, 7")
    k.e("s_waitcnt lgkmcnt(0)")
    k.srd(8, 4, 5, WS_HLN, MAT_BYTES)
    k.srd(12, 6, 7, 0, 2048*1536*2)
    k.srd(16, 4, 5, WS_GT, GT_BYTES)
    k.srd(20, 24, 25, 0, 1536*2)
    k.e("s_mov_b32 s34, s32")
    k.e("s_mov_b32 s35, s33")
    ACC = gemm_core(k, 32, 1280, 3072, 34, 35, 8, 12)
    k.e("v_and_b32 v3, 31, v1")
    k.e("v_lshrrev_b32 v4, 1, v2")
    k.e("v_lshlrev_b32 v4, 5, v4")
    k.e("v_add_u32 v3, v3, v4")
    k.e("v_lshlrev_b32 v5, 1, v3")
    k.e("buffer_load_ushort v13, v5, s[20:23], s33 offen")
    k.e("v_mul_u32_u24 v6, 1280, v3")
    k.e("v_and_b32 v4, 1, v2")
    k.e("v_lshlrev_b32 v4, 6, v4")
    k.e("v_add_u32 v6, v6, v4")
    k.e("v_lshrrev_b32 v4, 5, v1")
    k.e("v_lshlrev_b32 v4, 3, v4")
    k.e("v_add_u32 v6, v6, v4")
    k.e("s_mul_i32 s36, s29, 81920")
    k.e("s_add_u32 s36, s36, s32")
    k.e("s_waitcnt vmcnt(0)")
    k.e("v_lshlrev_b32 v13, 16, v13")
    c1 = -2.0 * 0.7978845608028654 * LOG2E
    c2 = c1 * 0.044715
    k.e(f"s_mov_b32 s37, {flit(c1)}")
    k.e(f"s_mov_b32 s38, {flit(c2)}")
    for q in range(4):
        for i in range(4):
            r = ACC + 4 * q + i
            bf16r(k, r, 14)
            k.e(f"v_add_f32 v{r}, v{r}, v13")
            bf16r(k, r, 14)
            k.e(f"v_mul_f32 v14, v{r}, v{r}")
            k.e(f"v_mov_b32 v15, s37")
            k.e(f"v_fma_f32 v14, v14, s38, v15")
            k.e(f"v_mul_f32 v14, v14, v{r}")
            k.e("v_exp_f32 v14, v14")
            k.nop(1)
            k.e("v_add_f32 v14, 1.0, v14")
            k.e("v_rcp_f32 v14, v14")
            k.nop(1)
            k.e(f"v_mul_f32 v{r}, v{r}, v14")
        k.e(f"v_cvt_pk_bf16_f32 v14, v{ACC+4*q}, v{ACC+4*q+1}")
        k.e(f"v_cvt_pk_bf16_f32 v15, v{ACC+4*q+2}, v{ACC+4*q+3}")
        k.e(f"buffer_store_dwordx2 v[14:15], v6, s[16:19], s36 offen offset:{16*q}")
        k.nop(2)
    k.lab(END)
    k.e("s_endpgm")
    return k, 192, 40

def gen_k5():
    k = Kern("k5_gemm2_kernel")
    END = "L_k5_end"
    k.e("s_cmp_ge_u32 s2, 320")
    k.e(f"s_cbranch_scc1 {END}")
    k.e(f"s_load_dwordx2 s[4:5], s[0:1], {KA['ws']}")
    k.e(f"s_load_dwordx2 s[6:7], s[0:1], {KA['w2']}")
    k.e(f"s_load_dwordx2 s[24:25], s[0:1], {KA['b2']}")
    k.e(f"s_load_dwordx2 s[40:41], s[0:1], {KA['out']}")
    k.e("s_and_b32 s26, s2, 7")
    k.e("s_lshr_b32 s27, s2, 3")
    k.e("s_lshr_b32 s28, s27, 2")
    k.e("s_and_b32 s29, s27, 3")
    k.e("s_lshl_b32 s30, s26, 2")
    k.e("s_add_u32 s29, s29, s30")
    k.e("s_lshl_b32 s32, s28, 7")
    k.e("s_lshl_b32 s33, s29, 7")
    k.e("s_waitcnt lgkmcnt(0)")
    k.srd(8, 4, 5, WS_GT, GT_BYTES)
    k.srd(12, 6, 7, 0, 1536*2048*2)
    k.srd(16, 4, 5, WS_H, MAT_BYTES)
    k.srd(20, 24, 25, 0, 2048*2)
    k.srd(44, 40, 41, 0, MAT_BYTES)
    k.e("s_mov_b32 s34, s32")
    k.e("s_mov_b32 s35, s33")
    ACC = gemm_core(k, 24, 1280, 4096, 34, 35, 8, 12)
    k.e("v_and_b32 v3, 31, v1")
    k.e("v_lshrrev_b32 v4, 1, v2")
    k.e("v_lshlrev_b32 v4, 5, v4")
    k.e("v_add_u32 v3, v3, v4")
    k.e("v_lshlrev_b32 v5, 1, v3")
    k.e("buffer_load_ushort v13, v5, s[20:23], s33 offen")
    k.e("v_mul_u32_u24 v6, 1280, v3")
    k.e("v_and_b32 v4, 1, v2")
    k.e("v_lshlrev_b32 v4, 6, v4")
    k.e("v_add_u32 v6, v6, v4")
    k.e("v_lshrrev_b32 v4, 5, v1")
    k.e("v_lshlrev_b32 v4, 3, v4")
    k.e("v_add_u32 v6, v6, v4")
    k.e("s_mul_i32 s36, s29, 81920")
    k.e("s_add_u32 s36, s36, s32")
    for q in range(4):
        k.e(f"buffer_load_dwordx2 v[{64+2*q}:{65+2*q}], v6, s[16:19], s36 offen offset:{16*q}")
    k.e("s_waitcnt vmcnt(0)")
    k.e("v_lshlrev_b32 v13, 16, v13")
    for q in range(4):
        for i in range(4):
            r = ACC + 4 * q + i
            bf16r(k, r, 14)
            k.e(f"v_add_f32 v{r}, v{r}, v13")
            bf16r(k, r, 14)
            src = 64 + 2 * q + i // 2
            if i % 2 == 0:
                k.e(f"v_lshlrev_b32 v14, 16, v{src}")
            else:
                k.e(f"v_and_b32 v14, 0xffff0000, v{src}")
            k.e(f"v_add_f32 v{r}, v{r}, v14")
        k.e(f"v_cvt_pk_bf16_f32 v14, v{ACC+4*q}, v{ACC+4*q+1}")
        k.e(f"v_cvt_pk_bf16_f32 v15, v{ACC+4*q+2}, v{ACC+4*q+3}")
        k.e(f"buffer_store_dwordx2 v[14:15], v6, s[44:47], s36 offen offset:{16*q}")
        k.nop(2)
    k.lab(END)
    k.e("s_endpgm")
    return k, 192, 48
```

```python
from gen_common import *

def ln10(k, xs, outs, T, sA, round_out):
    t0, vmean, t2, mbf, t4 = T[:5]
    k.e(f"v_add_f32 v{t0}, v{xs[0]}, v{xs[1]}")
    for i in range(2, 10):
        k.e(f"v_add_f32 v{t0}, v{t0}, v{xs[i]}")
    k.wave_sum(t0, sA)
    k.e(f"v_mov_b32 v{vmean}, s{sA}")
    k.e(f"v_mul_f32 v{vmean}, {flit(1.0/640)}, v{vmean}")
    k.e(f"v_sub_f32 v{t2}, v{xs[0]}, v{vmean}")
    k.e(f"v_mul_f32 v{t0}, v{t2}, v{t2}")
    for i in range(1, 10):
        k.e(f"v_sub_f32 v{t2}, v{xs[i]}, v{vmean}")
        k.e(f"v_fmac_f32 v{t0}, v{t2}, v{t2}")
    k.wave_sum(t0, sA)
    k.e(f"v_mov_b32 v{t2}, s{sA}")
    k.e(f"v_mul_f32 v{t2}, {flit(1.0/640)}, v{t2}")
    k.e(f"v_cvt_pk_bf16_f32 v{mbf}, v{vmean}, v{vmean}")
    k.e(f"v_lshlrev_b32 v{mbf}, 16, v{mbf}")
    k.e(f"v_cvt_pk_bf16_f32 v{t4}, v{t2}, v{t2}")
    k.e(f"v_lshlrev_b32 v{t4}, 16, v{t4}")
    k.e(f"v_add_f32 v{t4}, {flit(1e-5)}, v{t4}")
    k.e(f"v_cvt_pk_bf16_f32 v{t4}, v{t4}, v{t4}")
    k.e(f"v_lshlrev_b32 v{t4}, 16, v{t4}")
    k.e(f"v_sqrt_f32 v{t4}, v{t4}")
    k.nop(1)
    k.e(f"v_cvt_pk_bf16_f32 v{t4}, v{t4}, v{t4}")
    k.e(f"v_lshlrev_b32 v{t4}, 16, v{t4}")
    k.e(f"v_rcp_f32 v{t0}, v{t4}")
    k.nop(1)
    for i in range(0, 10, 2):
        a, b = outs[i], outs[i + 1]
        k.e(f"v_sub_f32 v{a}, v{xs[i]}, v{mbf}")
        k.e(f"v_sub_f32 v{b}, v{xs[i+1]}, v{mbf}")
        k.e(f"v_cvt_pk_bf16_f32 v{t2}, v{a}, v{b}")
        k.e(f"v_lshlrev_b32 v{a}, 16, v{t2}")
        k.e(f"v_and_b32 v{b}, 0xffff0000, v{t2}")
        for r in (a, b):
            k.e(f"v_mul_f32 v{t2}, v{r}, v{t0}")
            k.e(f"v_fma_f32 v{r}, -v{t2}, v{t4}, v{r}")
            k.e(f"v_fma_f32 v{r}, v{r}, v{t0}, v{t2}")
    if round_out:
        for i in range(0, 10, 2):
            a, b = outs[i], outs[i + 1]
            k.e(f"v_cvt_pk_bf16_f32 v{t2}, v{a}, v{b}")
            k.e(f"v_lshlrev_b32 v{a}, 16, v{t2}")
            k.e(f"v_and_b32 v{b}, 0xffff0000, v{t2}")

def gen_k1():
    k = Kern("k1_lnkgen_kernel")
    END = "L_k1_end"; KGEN = "L_k1_kgen"
    k.e("s_cmp_ge_u32 s2, 704")
    k.e(f"s_cbranch_scc1 {END}")
    k.e("s_cmp_ge_u32 s2, 64")
    k.e(f"s_cbranch_scc1 {KGEN}")
    k.e(f"s_load_dwordx2 s[4:5], s[0:1], {KA['x']}")
    k.e(f"s_load_dwordx2 s[6:7], s[0:1], {KA['ws']}")
    k.e("v_and_b32 v1, 63, v0")
    k.e("v_lshrrev_b32 v2, 6, v0")
    k.e("s_mul_i32 s16, s2, 40960")
    k.e("s_waitcnt lgkmcnt(0)")
    k.srd(8, 4, 5, 0, MAT_BYTES)
    k.srd(12, 6, 7, WS_UT, MAT_BYTES)
    k.e("v_lshlrev_b32 v3, 2, v1")
    k.e("v_mul_u32_u24 v11, 10240, v2")
    k.e("v_add_u32 v3, v3, v11")
    for rr in range(1, 8):
        k.e(f"v_add_u32 v{3+rr}, {1280*rr}, v3")
    for rr in range(8):
        for i in range(5):
            k.e(f"buffer_load_dword v{16+rr*5+i}, v{3+rr}, s[8:11], s16 offen offset:{i*256}")
    k.e("v_mul_u32_u24 v12, 160, v1")
    k.e("v_lshlrev_b32 v13, 4, v2")
    k.e("v_add_u32 v12, v12, v13")
    T = [120, 121, 122, 123, 124]
    for pr in range(4):
        outs = {}
        for half in range(2):
            rr = 2 * pr + half
            k.e(f"s_waitcnt vmcnt({40 - 5*(rr+1)})")
            xs = [60 + half * 20 + i for i in range(10)]
            for i in range(5):
                k.e(f"v_lshlrev_b32 v{xs[2*i]}, 16, v{16+rr*5+i}")
                k.e(f"v_and_b32 v{xs[2*i+1]}, 0xffff0000, v{16+rr*5+i}")
            o = [100 + half * 10 + i for i in range(10)]
            ln10(k, xs, o, T, 20, False)
            outs[half] = o
        for e in range(10):
            k.e(f"v_cvt_pk_bf16_f32 v{T[0]}, v{outs[0][e]}, v{outs[1][e]}")
            k.e(f"ds_write_b32 v12, v{T[0]} offset:{(e//2)*10240 + (e%2)*80 + 4*pr}")
    k.e("s_waitcnt lgkmcnt(0)")
    k.e("s_barrier")
    k.e("v_lshrrev_b32 v3, 2, v0")
    k.e("v_and_b32 v4, 3, v0")
    k.e("v_mul_u32_u24 v5, 80, v3")
    k.e("v_lshlrev_b32 v6, 4, v4")
    k.e("v_add_u32 v5, v5, v6")
    k.e("v_lshlrev_b32 v7, 12, v3")
    k.e("v_add_u32 v7, v7, v6")
    k.e("s_lshl_b32 s17, s2, 6")
    for j in range(10):
        k.e(f"ds_read_b128 v[{16+4*j}:{19+4*j}], v5 offset:{5120*j}")
    for j in range(10):
        k.e(f"s_waitcnt lgkmcnt({9-j})")
        k.e(f"buffer_store_dwordx4 v[{16+4*j}:{19+4*j}], v7, s[12:15], s17 offen")
        if j < 9:
            k.e("v_add_u32 v7, 0x40000, v7")
    k.e("s_endpgm")
    k.lab(KGEN)
    PAR, PART, FIN, S2048 = 0, 4096, 36864, 45072
    k.e("s_sub_u32 s3, s2, 64")
    k.e(f"s_load_dwordx2 s[4:5], s[0:1], {KA['lar']}")
    k.e(f"s_load_dwordx2 s[6:7], s[0:1], {KA['aim']}")
    k.e(f"s_load_dwordx2 s[20:21], s[0:1], {KA['cre']}")
    k.e(f"s_load_dwordx2 s[22:23], s[0:1], {KA['cim']}")
    k.e(f"s_load_dwordx2 s[24:25], s[0:1], {KA['ldt']}")
    k.e(f"s_load_dwordx2 s[26:27], s[0:1], {KA['ws']}")
    k.e("v_and_b32 v1, 63, v0")
    k.e("v_lshrrev_b32 v2, 6, v0")
    k.e("s_waitcnt lgkmcnt(0)")
    k.srd(8, 4, 5, 0, 640*192*2)
    k.srd(12, 6, 7, 0, 640*192*2)
    k.srd(28, 20, 21, 0, 640*192*2)
    k.srd(32, 22, 23, 0, 640*192*2)
    k.srd(36, 24, 25, 0, 640*2)
    k.srd(40, 26, 27, WS_KT, KT_BYTES)
    k.e("v_mul_u32_u24 v3, 48, v2")
    k.e("v_add_u32 v3, v3, v1")
    k.e("s_mul_i32 s16, s3, 384")
    k.e("v_lshlrev_b32 v4, 1, v3")
    k.e("buffer_load_ushort v10, v4, s[8:11], s16 offen")
    k.e("buffer_load_ushort v11, v4, s[12:15], s16 offen")
    k.e("buffer_load_ushort v12, v4, s[28:31], s16 offen")
    k.e("buffer_load_ushort v13, v4, s[32:35], s16 offen")
    k.e("s_lshl_b32 s17, s3, 1")
    k.e("v_mov_b32 v5, 0")
    k.e("buffer_load_ushort v14, v5, s[36:39], s17 offen")
    k.e("s_waitcnt vmcnt(0)")
    for r in (10, 11, 12, 13, 14):
        k.e(f"v_lshlrev_b32 v{r}, 16, v{r}")
    k.e(f"v_mul_f32 v14, {flit(LOG2E)}, v14")
    k.e("v_exp_f32 v14, v14")
    k.e(f"v_mul_f32 v10, {flit(LOG2E)}, v10")
    k.e("v_exp_f32 v10, v10")
    k.nop(1)
    k.e("v_cvt_pk_bf16_f32 v14, v14, v14")
    k.e("v_lshlrev_b32 v14, 16, v14")
    k.e("v_cvt_pk_bf16_f32 v10, v10, v10")
    k.e("v_lshlrev_b32 v10, 16, v10")
    k.e("v_mul_f32 v10, v10, v14")
    k.e(f"v_mul_f32 v16, {flit(-LOG2E)}, v10")
    k.e("v_mul_f32 v11, v11, v14")
    k.e(f"v_mul_f32 v17, {flit(INV2PI)}, v11")
    k.e("v_mul_f32 v18, v12, v14")
    k.e("v_add_f32 v18, v18, v18")
    k.e("v_mul_f32 v19, v13, v14")
    k.e("v_add_f32 v19, v19, v19")
    k.e(f"v_mul_f32 v20, 0x45000000, v16")
    k.e("v_exp_f32 v20, v20")
    k.e(f"v_mul_f32 v21, 0x45000000, v17")
    k.e("v_fract_f32 v21, v21")
    k.e("v_sin_f32 v22, v21")
    k.e("v_cos_f32 v23, v21")
    k.nop(1)
    k.e("v_mul_f32 v24, v18, v23")
    k.e("v_fma_f32 v24, -v19, v22, v24")
    k.e("v_mul_f32 v24, v24, v20")
    k.e("v_cmp_gt_u32 vcc, 48, v1")
    k.nop(2)
    k.e("v_cndmask_b32 v24, 0, v24, vcc")
    k.e("s_and_saveexec_b64 s[44:45], vcc")
    k.e("v_lshlrev_b32 v5, 4, v3")
    k.e(f"ds_write_b128 v5, v[16:19] offset:{PAR}")
    k.e("s_mov_b64 exec, s[44:45]")
    k.wave_sum(24, 46)
    k.e("v_mov_b32 v24, s46")
    k.e("v_lshlrev_b32 v5, 2, v2")
    k.e(f"ds_write_b32 v5, v24 offset:{S2048}")
    k.e("s_waitcnt lgkmcnt(0)")
    k.e("v_and_b32 v4, 31, v1")
    k.e("v_lshrrev_b32 v5, 5, v1")
    k.e("v_cvt_f32_u32 v6, v4")
    k.e("v_lshlrev_b32 v7, 5, v4")
    k.e("v_cvt_f32_u32 v7, v7")
    k.e(f"v_add_f32 v8, 0x44800000, v7")
    k.e("v_mul_u32_u24 v9, 48, v2")
    k.e("v_lshlrev_b32 v10, 2, v5")
    k.e("v_add_u32 v9, v9, v10")
    k.e("v_lshlrev_b32 v9, 4, v9")
    ACC = [128, 144]
    for T_ in range(2):
        for r in range(16):
            k.e(f"v_mov_b32 v{ACC[T_]+r}, 0")
    PR = 32
    BH, BL, AH0, AL0, AH1, AL1 = 48, 52, 56, 60, 64, 68
    t = [80, 81, 82, 83, 84, 85, 86, 87]
    def cexp(zr, zi, pf):
        k.e(f"v_mul_f32 v{t[0]}, v{zr}, v{pf}")
        k.e(f"v_mul_f32 v{t[1]}, v{zi}, v{pf}")
        k.e(f"v_exp_f32 v{t[0]}, v{t[0]}")
        k.e(f"v_fract_f32 v{t[1]}, v{t[1]}")
        k.e(f"v_sin_f32 v{t[2]}, v{t[1]}")
        k.e(f"v_cos_f32 v{t[3]}, v{t[1]}")
        k.nop(1)
    def split(re, im, dh, dl):
        k.e(f"v_cvt_pk_bf16_f32 v{dh}, v{re}, v{im}")
        k.e(f"v_lshlrev_b32 v{t[6]}, 16, v{dh}")
        k.e(f"v_and_b32 v{t[7]}, 0xffff0000, v{dh}")
        k.e(f"v_sub_f32 v{t[6]}, v{re}, v{t[6]}")
        k.e(f"v_sub_f32 v{t[7]}, v{im}, v{t[7]}")
        k.e(f"v_cvt_pk_bf16_f32 v{dl}, v{t[6]}, v{t[7]}")
    for kk in range(6):
        for jj in range(4):
            k.e(f"ds_read_b128 v[{PR+4*jj}:{PR+4*jj+3}], v9 offset:{PAR + (8*kk+jj)*16}")
        for jj in range(4):
            k.e(f"s_waitcnt lgkmcnt({3-jj})")
            zr, zi, cr, ci = PR + 4*jj, PR + 4*jj + 1, PR + 4*jj + 2, PR + 4*jj + 3
            cexp(zr, zi, 6)
            k.e(f"v_mul_f32 v{t[4]}, v{cr}, v{t[3]}")
            k.e(f"v_fma_f32 v{t[4]}, -v{ci}, v{t[2]}, v{t[4]}")
            k.e(f"v_mul_f32 v{t[5]}, v{cr}, v{t[2]}")
            k.e(f"v_fma_f32 v{t[5]}, v{ci}, v{t[3]}, v{t[5]}")
            k.e(f"v_mul_f32 v{t[4]}, v{t[4]}, v{t[0]}")
            k.e(f"v_mul_f32 v{t[5]}, -v{t[5]}, v{t[0]}")
            split(t[4], t[5], BH + jj, BL + jj)
            for (pf, AH, AL) in ((7, AH0, AL0), (8, AH1, AL1)):
                cexp(zr, zi, pf)
                k.e(f"v_mul_f32 v{t[4]}, v{t[3]}, v{t[0]}")
                k.e(f"v_mul_f32 v{t[5]}, v{t[2]}, v{t[0]}")
                split(t[4], t[5], AH + jj, AL + jj)
        k.nop(2)
        for (T_, AH, AL) in ((0, AH0, AL0), (1, AH1, AL1)):
            a = ACC[T_]
            k.e(f"v_mfma_f32_32x32x16_bf16 v[{a}:{a+15}], v[{AH}:{AH+3}], v[{BH}:{BH+3}], v[{a}:{a+15}]")
            k.e(f"v_mfma_f32_32x32x16_bf16 v[{a}:{a+15}], v[{AH}:{AH+3}], v[{BL}:{BL+3}], v[{a}:{a+15}]")
            k.e(f"v_mfma_f32_32x32x16_bf16 v[{a}:{a+15}], v[{AL}:{AL+3}], v[{BH}:{BH+3}], v[{a}:{a+15}]")
        k.nop(8)
    k.nop(16)
    k.e("v_lshlrev_b32 v9, 13, v2")
    k.e("v_lshlrev_b32 v10, 9, v5")
    k.e("v_add_u32 v9, v9, v10")
    k.e("v_lshlrev_b32 v10, 2, v4")
    k.e("v_add_u32 v9, v9, v10")
    for T_ in range(2):
        for r in range(16):
            k.e(f"ds_write_b32 v9, v{ACC[T_]+r} offset:{PART + 128*(32*T_ + 8*(r>>2) + (r&3))}")
    k.e("s_waitcnt lgkmcnt(0)")
    k.e("s_barrier")
    k.e("v_lshlrev_b32 v9, 5, v0")
    for w_ in range(4):
        k.e(f"ds_read_b128 v[{32+8*w_}:{35+8*w_}], v9 offset:{PART + 8192*w_}")
        k.e(f"ds_read_b128 v[{36+8*w_}:{39+8*w_}], v9 offset:{PART + 8192*w_ + 16}")
    k.e("s_waitcnt lgkmcnt(0)")
    for i in range(8):
        k.e(f"v_add_f32 v{32+i}, v{32+i}, v{40+i}")
        k.e(f"v_add_f32 v{48+i}, v{48+i}, v{56+i}")
        k.e(f"v_add_f32 v{32+i}, v{32+i}, v{48+i}")
    k.e(f"ds_write_b128 v9, v[32:35] offset:{FIN}")
    k.e(f"ds_write_b128 v9, v[36:39] offset:{FIN+16}")
    k.e("v_mov_b32 v10, 0")
    k.e(f"ds_read_b128 v[64:67], v10 offset:{S2048}")
    k.e("s_waitcnt lgkmcnt(0)")
    k.e("v_add_f32 v64, v64, v65")
    k.e("v_add_f32 v66, v66, v67")
    k.e("v_add_f32 v64, v64, v66")
    k.e(f"ds_write_b32 v10, v64 offset:{FIN+8192}")
    k.e("s_waitcnt lgkmcnt(0)")
    k.e("s_barrier")
    k.e("s_mul_i32 s16, s3, 16640")
    for it in range(5):
        k.e(f"v_add_u32 v3, {256*it}, v0")
        k.e("v_lshlrev_b32 v4, 1, v3")
        for q in range(3):
            k.e(f"v_add_u32 v{10+q}, {q}, v4")
            k.e(f"v_subrev_u32 v{10+q}, 31, v{10+q}")
        for q in range(3):
            k.e(f"v_cmp_gt_u32 vcc, 2048, v{10+q}")
            k.nop(2)
            k.e(f"v_cndmask_b32 v{13+q}, 0, v{10+q}, vcc")
            k.e(f"v_cvt_f32_u32 v{13+q}, v{13+q}")
            k.e(f"v_cvt_pk_bf16_f32 v{13+q}, v{13+q}, v{13+q}")
            k.e(f"v_lshlrev_b32 v{13+q}, 16, v{13+q}")
            k.e(f"v_cvt_u32_f32 v{13+q}, v{13+q}")
            k.e(f"v_lshlrev_b32 v{13+q}, 2, v{13+q}")
            k.e(f"ds_read_b32 v{16+q}, v{13+q} offset:{FIN}")
            k.e("s_waitcnt lgkmcnt(0)")
            k.e(f"v_cndmask_b32 v{16+q}, 0, v{16+q}, vcc")
        k.e("v_cvt_pk_bf16_f32 v20, v16, v17")
        k.e("v_cvt_pk_bf16_f32 v21, v17, v18")
        k.e("v_lshlrev_b32 v22, 16, v20")
        k.e("v_and_b32 v23, 0xffff0000, v20")
        k.e("v_and_b32 v24, 0xffff0000, v21")
        k.e("v_sub_f32 v22, v16, v22")
        k.e("v_sub_f32 v23, v17, v23")
        k.e("v_sub_f32 v24, v18, v24")
        k.e("v_cvt_pk_bf16_f32 v25, v22, v23")
        k.e("v_cvt_pk_bf16_f32 v26, v23, v24")
        k.e("v_lshlrev_b32 v4, 2, v3")
        if it == 4:
            k.e("v_cmp_gt_u32 vcc, 1040, v3")
            k.nop(2)
            k.e("s_and_saveexec_b64 s[44:45], vcc")
        k.e("buffer_store_dword v20, v4, s[40:43], s16 offen")
        k.e("v_add_u32 v5, 4160, v4")
        k.e("buffer_store_dword v21, v5, s[40:43], s16 offen")
        k.e("v_add_u32 v5, 8320, v4")
        k.e("buffer_store_dword v25, v5, s[40:43], s16 offen")
        k.e("v_add_u32 v5, 12480, v4")
        k.e("buffer_store_dword v26, v5, s[40:43], s16 offen")
        if it == 4:
            k.e("s_mov_b64 exec, s[44:45]")
    k.lab(END)
    k.e("s_endpgm")
    return k, 160, 48
```

```python
from gen_common import *

KOFF = 0
UOFF = 16640
POFF = 24320
LDS = POFF + 4 * 9216

def gen_k2():
    k = Kern("k2_conv_kernel")
    END = "L_k2_end"
    k.e("s_cmp_ge_u32 s2, 640")
    k.e(f"s_cbranch_scc1 {END}")
    k.e(f"s_load_dwordx2 s[4:5], s[0:1], {KA['ws']}")
    k.e(f"s_load_dwordx2 s[6:7], s[0:1], {KA['dsk']}")
    k.e("v_and_b32 v1, 63, v0")
    k.e("v_lshrrev_b32 v2, 6, v0")
    k.e("s_waitcnt lgkmcnt(0)")
    k.srd(8, 4, 5, WS_KT, KT_BYTES)
    k.srd(12, 4, 5, WS_UT, MAT_BYTES)
    k.srd(16, 4, 5, WS_SSM, MAT_BYTES)
    k.srd(20, 6, 7, 0, 1280)
    k.e("s_mul_i32 s24, s2, 16640")
    k.e("s_lshl_b32 s25, s2, 12")
    k.e("s_lshl_b32 s26, s2, 1")
    k.e("v_lshlrev_b32 v3, 4, v0")
    for j in range(4):
        k.e(f"buffer_load_dwordx4 v[{16+4*j}:{19+4*j}], v3, s[8:11], s24 offen offset:{4096*j if j < 1 else 0}" if j == 0 else f"s_nop 0")
        if j > 0:
            k.e(f"v_add_u32 v4, {4096*j}, v3")
            k.e(f"buffer_load_dwordx4 v[{16+4*j}:{19+4*j}], v4, s[8:11], s24 offen")
    k.e("buffer_load_dwordx4 v[40:43], v3, s[12:15], s25 offen")
    k.e("v_mov_b32 v5, 0")
    k.e("buffer_load_ushort v44, v5, s[20:23], s26 offen")
    k.e("v_cmp_gt_u32 vcc, 16, v0")
    k.nop(2)
    k.e("s_and_saveexec_b64 s[28:29], vcc")
    k.e("v_add_u32 v4, 16384, v3")
    k.e("buffer_load_dwordx4 v[32:35], v4, s[8:11], s24 offen")
    k.e("s_waitcnt vmcnt(0)")
    k.e(f"ds_write_b128 v4, v[32:35] offset:{KOFF}")
    k.e("s_mov_b64 exec, s[28:29]")
    k.e("v_lshrrev_b32 v4, 2, v0")
    k.e("v_mul_u32_u24 v4, 80, v4")
    k.e("v_and_b32 v6, 3, v0")
    k.e("v_lshlrev_b32 v6, 4, v6")
    k.e("v_add_u32 v4, v4, v6")
    k.e("v_mov_b32 v36, 0"); k.e("v_mov_b32 v37, 0"); k.e("v_mov_b32 v38, 0"); k.e("v_mov_b32 v39, 0")
    k.e("v_cmp_gt_u32 vcc, 124, v0")
    k.nop(2)
    k.e("s_and_saveexec_b64 s[28:29], vcc")
    k.e(f"ds_write_b128 v4, v[36:39] offset:{UOFF + 64*80}")
    k.e("s_mov_b64 exec, s[28:29]")
    k.e("s_waitcnt vmcnt(0)")
    for j in range(4):
        if j == 0:
            k.e(f"ds_write_b128 v3, v[16:19] offset:{KOFF}")
        else:
            k.e(f"ds_write_b128 v3, v[{16+4*j}:{19+4*j}] offset:{KOFF + 4096*j}")
    for j in range(4):
        k.e(f"v_alignbit_b32 v{36+j}, v{43-j}, v{43-j}, 16")
    k.e("v_lshlrev_b32 v4, 3, v0")
    k.e("v_sub_u32 v4, 2040, v4")
    k.e("v_lshrrev_b32 v6, 5, v4")
    k.e("v_mul_u32_u24 v6, 80, v6")
    k.e("v_and_b32 v4, 31, v4")
    k.e("v_lshlrev_b32 v4, 1, v4")
    k.e("v_add_u32 v4, v4, v6")
    k.e(f"ds_write_b128 v4, v[36:39] offset:{UOFF}")
    k.e("v_and_b32 v4, 31, v1")
    k.e("v_lshrrev_b32 v5, 5, v1")
    k.e("v_and_b32 v6, 1, v4")
    k.e("v_mul_u32_u24 v6, 4160, v6")
    k.e("v_and_b32 v7, 30, v4")
    k.e("v_lshlrev_b32 v7, 1, v7")
    k.e("v_add_u32 v6, v6, v7")
    k.e("v_lshlrev_b32 v7, 4, v5")
    k.e("v_add_u32 v6, v6, v7")
    k.e("v_lshlrev_b32 v8, 6, v2")
    k.e("v_add_u32 v6, v6, v8")
    k.e("v_add_u32 v8, 8320, v6")
    k.e("v_sub_u32 v9, 31, v4")
    k.e("v_mul_u32_u24 v9, 80, v9")
    k.e("v_add_u32 v9, v9, v7")
    k.e("v_mul_u32_u24 v10, 80, v2")
    k.e("v_add_u32 v9, v9, v10")
    k.e(f"v_add_u32 v9, {UOFF}, v9")
    k.e("v_add_u32 v10, 2560, v9")
    ACC1, ACC0 = 64, 80
    for r in range(16):
        k.e(f"v_mov_b32 v{ACC1+r}, 0")
        k.e(f"v_mov_b32 v{ACC0+r}, 0")
    k.e("s_waitcnt lgkmcnt(0)")
    k.e("s_barrier")
    SETS = [96, 112]
    def reads(s):
        i, h = s >> 1, s & 1
        b = SETS[s & 1]
        n = 0
        k.e(f"ds_read2_b32 v[{b}:{b+1}], v6 offset0:{8*h} offset1:{8*h+1}")
        k.e(f"ds_read2_b32 v[{b+2}:{b+3}], v6 offset0:{8*h+2} offset1:{8*h+3}")
        k.e(f"ds_read2_b32 v[{b+4}:{b+5}], v8 offset0:{8*h} offset1:{8*h+1}")
        k.e(f"ds_read2_b32 v[{b+6}:{b+7}], v8 offset0:{8*h+2} offset1:{8*h+3}")
        k.e(f"ds_read_b128 v[{b+8}:{b+11}], v9 offset:{320*i + 32*h}")
        n = 5
        if i < 8:
            k.e(f"ds_read_b128 v[{b+12}:{b+15}], v10 offset:{320*i + 32*h}")
            n = 6
        if h == 1:
            k.e("v_add_u32 v6, 256, v6")
            k.e("v_add_u32 v8, 256, v8")
        return n
    def mfmas(s):
        i = s >> 1
        b = SETS[s & 1]
        k.e(f"v_mfma_f32_32x32x16_bf16 v[{ACC1}:{ACC1+15}], v[{b}:{b+3}], v[{b+8}:{b+11}], v[{ACC1}:{ACC1+15}]")
        k.e(f"v_mfma_f32_32x32x16_bf16 v[{ACC1}:{ACC1+15}], v[{b+4}:{b+7}], v[{b+8}:{b+11}], v[{ACC1}:{ACC1+15}]")
        if i < 8:
            k.e(f"v_mfma_f32_32x32x16_bf16 v[{ACC0}:{ACC0+15}], v[{b}:{b+3}], v[{b+12}:{b+15}], v[{ACC0}:{ACC0+15}]")
            k.e(f"v_mfma_f32_32x32x16_bf16 v[{ACC0}:{ACC0+15}], v[{b+4}:{b+7}], v[{b+12}:{b+15}], v[{ACC0}:{ACC0+15}]")
    reads(0)
    for s in range(32):
        if s + 1 < 32:
            n = reads(s + 1)
            k.e(f"s_waitcnt lgkmcnt({n})")
        else:
            k.e("s_waitcnt lgkmcnt(0)")
        mfmas(s)
    k.nop(16)
    k.e("v_mul_u32_u24 v6, 144, v4")
    k.e("v_add_u32 v6, v6, v7")
    k.e("v_mul_u32_u24 v8, 9216, v2")
    k.e("v_add_u32 v6, v6, v8")
    for t_, ACC in ((0, ACC0), (1, ACC1)):
        for q in range(4):
            k.e(f"ds_write_b128 v6, v[{ACC+4*q}:{ACC+4*q+3}] offset:{POFF + 144*32*t_ + 32*q}")
    k.e("s_waitcnt lgkmcnt(0)")
    k.e("s_barrier")
    k.e("v_lshrrev_b32 v6, 2, v0")
    k.e("v_mul_u32_u24 v6, 144, v6")
    k.e("v_and_b32 v7, 3, v0")
    k.e("v_lshlrev_b32 v7, 5, v7")
    k.e("v_add_u32 v6, v6, v7")
    for w_ in range(4):
        k.e(f"ds_read_b128 v[{96+8*w_}:{99+8*w_}], v6 offset:{POFF + 9216*w_}")
        k.e(f"ds_read_b128 v[{100+8*w_}:{103+8*w_}], v6 offset:{POFF + 9216*w_ + 16}")
    k.e("s_waitcnt lgkmcnt(0)")
    for i in range(8):
        k.e(f"v_add_f32 v{96+i}, v{96+i}, v{104+i}")
        k.e(f"v_add_f32 v{112+i}, v{112+i}, v{120+i}")
        k.e(f"v_add_f32 v{96+i}, v{96+i}, v{112+i}")
    k.e("v_lshlrev_b32 v44, 16, v44")
    for j in range(4):
        k.e(f"v_cvt_pk_bf16_f32 v16, v{96+2*j}, v{97+2*j}")
        k.e("v_lshlrev_b32 v17, 16, v16")
        k.e("v_and_b32 v18, 0xffff0000, v16")
        k.e(f"v_lshlrev_b32 v19, 16, v{40+j}")
        k.e(f"v_and_b32 v20, 0xffff0000, v{40+j}")
        k.e("v_mul_f32 v19, v19, v44")
        k.e("v_mul_f32 v20, v20, v44")
        k.e("v_cvt_pk_bf16_f32 v21, v19, v20")
        k.e("v_lshlrev_b32 v19, 16, v21")
        k.e("v_and_b32 v20, 0xffff0000, v21")
        k.e("v_add_f32 v17, v17, v19")
        k.e("v_add_f32 v18, v18, v20")
        k.e(f"v_cvt_pk_bf16_f32 v{24+j}, v17, v18")
    k.e("buffer_store_dwordx4 v[24:27], v3, s[16:19], s25 offen")
    k.lab(END)
    k.e("s_endpgm")
    return k, 128, 32
```

```python
from gen_common import *
from gen_k1 import ln10

LDS = 51200

def gen_k3():
    k = Kern("k3_ln2_kernel")
    END = "L_k3_end"
    k.e("s_cmp_ge_u32 s2, 64")
    k.e(f"s_cbranch_scc1 {END}")
    k.e(f"s_load_dwordx2 s[4:5], s[0:1], {KA['x']}")
    k.e(f"s_load_dwordx2 s[6:7], s[0:1], {KA['ws']}")
    k.e("v_and_b32 v1, 63, v0")
    k.e("v_lshrrev_b32 v2, 6, v0")
    k.e("s_mul_i32 s16, s2, 40960")
    k.e("s_lshl_b32 s17, s2, 6")
    k.e("s_waitcnt lgkmcnt(0)")
    k.srd(8, 4, 5, 0, MAT_BYTES)
    k.srd(12, 6, 7, WS_SSM, MAT_BYTES)
    k.srd(20, 6, 7, WS_H, MAT_BYTES)
    k.srd(24, 6, 7, WS_HLN, MAT_BYTES)
    k.e("v_lshrrev_b32 v3, 2, v0")
    k.e("v_and_b32 v4, 3, v0")
    k.e("v_mul_u32_u24 v5, 80, v3")
    k.e("v_lshlrev_b32 v6, 4, v4")
    k.e("v_add_u32 v5, v5, v6")
    k.e("v_lshlrev_b32 v7, 12, v3")
    k.e("v_add_u32 v7, v7, v6")
    for j in range(10):
        k.e(f"buffer_load_dwordx4 v[{56+4*j}:{59+4*j}], v7, s[12:15], s17 offen")
        if j < 9:
            k.e("v_add_u32 v7, 0x40000, v7")
    k.e("v_lshlrev_b32 v3, 2, v1")
    k.e("v_mul_u32_u24 v11, 10240, v2")
    k.e("v_add_u32 v3, v3, v11")
    rowb = [3, 4, 6, 7, 8, 9, 10, 11]
    for rr in range(1, 8):
        k.e(f"v_add_u32 v{rowb[rr]}, {1280*rr}, v3")
    for rr in range(8):
        for i in range(5):
            k.e(f"buffer_load_dword v{16+rr*5+i}, v{rowb[rr]}, s[8:11], s16 offen offset:{i*256}")
    for j in range(10):
        k.e(f"s_waitcnt vmcnt({40 + 9 - j})")
        k.e(f"ds_write_b128 v5, v[{56+4*j}:{59+4*j}] offset:{5120*j}")
    k.e("s_waitcnt lgkmcnt(0)")
    k.e("s_barrier")
    k.e("v_mul_u32_u24 v12, 160, v1")
    k.e("v_lshlrev_b32 v13, 4, v2")
    k.e("v_add_u32 v12, v12, v13")
    T = [150, 151, 152, 153, 154]
    for pr in range(4):
        for e in range(10):
            k.e(f"ds_read_b32 v{130+e}, v12 offset:{(e//2)*10240 + (e%2)*80 + 4*pr}")
        k.e("s_waitcnt lgkmcnt(0)")
        for half in range(2):
            rr = 2 * pr + half
            k.e(f"s_waitcnt vmcnt({40 - 5*(rr+1)})")
            hs = [60 + half * 20 + i for i in range(10)]
            for i in range(10):
                src = 16 + rr * 5 + i // 2
                if i % 2 == 0:
                    k.e(f"v_lshlrev_b32 v{hs[i]}, 16, v{src}")
                else:
                    k.e(f"v_and_b32 v{hs[i]}, 0xffff0000, v{src}")
                if half == 0:
                    k.e(f"v_lshlrev_b32 v{T[0]}, 16, v{130+i}")
                else:
                    k.e(f"v_and_b32 v{T[0]}, 0xffff0000, v{130+i}")
                k.e(f"v_add_f32 v{hs[i]}, v{hs[i]}, v{T[0]}")
            for i in range(5):
                k.e(f"v_cvt_pk_bf16_f32 v{T[0]}, v{hs[2*i]}, v{hs[2*i+1]}")
                k.e(f"buffer_store_dword v{T[0]}, v{rowb[rr]}, s[20:23], s16 offen offset:{i*256}")
                k.e(f"v_lshlrev_b32 v{hs[2*i]}, 16, v{T[0]}")
                k.e(f"v_and_b32 v{hs[2*i+1]}, 0xffff0000, v{T[0]}")
            o1 = [100 + i for i in range(10)]
            ln10(k, hs, o1, T, 28, True)
            o2 = [110 + i for i in range(10)]
            ln10(k, o1, o2, T, 28, False)
            for i in range(5):
                k.e(f"v_cvt_pk_bf16_f32 v{T[0]}, v{o2[2*i]}, v{o2[2*i+1]}")
                k.e(f"buffer_store_dword v{T[0]}, v{rowb[rr]}, s[24:27], s16 offen offset:{i*256}")
    k.lab(END)
    k.e("s_endpgm")
    return k, 160, 32
```

```python
import sys
sys.path.insert(0, 'dev')
from gen_common import *
import gen_k1

def build(path, which=None):
    kernels = []
    k, v, s = gen_k1.gen_k1(); kernels.append((k, v, s, (704,1,1), 256, 51200))
    try:
        import gen_k2
        k, v, s = gen_k2.gen_k2(); kernels.append((k, v, s, (640,1,1), 256, gen_k2.LDS))
        import gen_k3
        k, v, s = gen_k3.gen_k3(); kernels.append((k, v, s, (64,1,1), 256, gen_k3.LDS))
        import gen_gemm
        k, v, s = gen_gemm.gen_k4(); kernels.append((k, v, s, (240,1,1), 256, gen_gemm.LDS))
        k, v, s = gen_gemm.gen_k5(); kernels.append((k, v, s, (320,1,1), 256, gen_gemm.LDS))
    except ImportError as e:
        print('partial build:', e)
    if which is not None:
        kernels = kernels[:which]
    head = open('sequential_preLN__ssm_conv_s4d__mixer_token_mlp__prompt.s.ref').read().split('\n')
    head = [l for l in head if l.startswith(';') and '@launch' not in l]
    out = list(head)
    for (k, v, s, g, b, lds) in kernels:
        out.append(f"; @launch kernel={k.name} grid=({g[0]},{g[1]},{g[2]}) block=({b},1,1) lds={lds}")
    out.append('.amdgcn_target "amdgcn-amd-amdhsa--gfx950"')
    out.append('.text')
    descs = []
    for (k, v, s, g, b, lds) in kernels:
        body, desc = k.text(v, s)
        out.append(body); descs.append(desc)
    out.append('.section .rodata,"a"')
    for d in descs:
        out.append('.p2align 6'); out.append(d)
    open(path, 'w').write('\n'.join(out) + '\n')

if __name__ == '__main__':
    build(sys.argv[1] if len(sys.argv) > 1 else 'sequential_preLN__ssm_conv_s4d__mixer_token_mlp__prompt.s',
          int(sys.argv[2]) if len(sys.argv) > 2 else None)
```

```python
LOG2E = 1.4426950408889634
INV2PI = 0.15915494309189535

import struct
def f32bits(x):
    return struct.unpack('<I', struct.pack('<f', x))[0]
def flit(x):
    return f"0x{f32bits(x):08x}"

KA = dict(x=0, lar=8, aim=16, cre=24, cim=32, ldt=40, dsk=48, bx=56, w1=64, b1=72, w2=80, b2=88, out=96, dbg=104, ws=112)

WS_UT  = 0x000000
WS_SSM = 0x280000
WS_H   = 0x500000
WS_HLN = 0x780000
WS_GT  = 0xA00000
WS_KT  = 0xC00000
MAT_BYTES = 2048 * 640 * 2
GT_BYTES = 1536 * 640 * 2
KT_CH = 16640
KT_BYTES = 640 * KT_CH

class Kern:
    def __init__(s, name):
        s.name = name; s.L = []; s.uid = 0
    def e(s, txt):
        s.L.append("    " + txt)
    def c(s, txt):
        s.L.append("    ; " + txt)
    def lab(s, l):
        s.L.append(l + ":")
    def newlab(s, base):
        s.uid += 1
        return f"L_{s.name[:6]}_{base}_{s.uid}"
    def nop(s, n):
        while n > 0:
            k = min(n, 16); s.e(f"s_nop {k-1}"); n -= k
    def srd(s, dst, lo, hi, off, size):
        if off:
            s.e(f"s_add_u32 s{dst}, s{lo}, {off}")
            s.e(f"s_addc_u32 s{dst+1}, s{hi}, 0")
        else:
            s.e(f"s_mov_b32 s{dst}, s{lo}")
            s.e(f"s_mov_b32 s{dst+1}, s{hi}")
        s.e(f"s_mov_b32 s{dst+2}, {size}")
        s.e(f"s_mov_b32 s{dst+3}, 0x00020000")
    def wave_sum(s, v, sdst):
        for mod in ["quad_perm:[1,0,3,2] row_mask:0xf bank_mask:0xf", "quad_perm:[2,3,0,1] row_mask:0xf bank_mask:0xf",
                    "row_half_mirror row_mask:0xf bank_mask:0xf", "row_mirror row_mask:0xf bank_mask:0xf",
                    "row_bcast:15 row_mask:0xa bank_mask:0xf", "row_bcast:31 row_mask:0xc bank_mask:0xf"]:
            s.nop(2)
            s.e(f"v_add_f32_dpp v{v}, v{v}, v{v} {mod}")
        s.nop(1)
        s.e(f"v_readlane_b32 s{sdst}, v{v}, 63")
        s.nop(2)
    def wave_sum_multi(s, vs, sdsts):
        n = len(vs)
        pad = max(0, 2 - (n - 1))
        for mod in ["quad_perm:[1,0,3,2] row_mask:0xf bank_mask:0xf", "quad_perm:[2,3,0,1] row_mask:0xf bank_mask:0xf",
                    "row_half_mirror row_mask:0xf bank_mask:0xf", "row_mirror row_mask:0xf bank_mask:0xf",
                    "row_bcast:15 row_mask:0xa bank_mask:0xf", "row_bcast:31 row_mask:0xc bank_mask:0xf"]:
            s.nop(pad)
            for v in vs:
                s.e(f"v_add_f32_dpp v{v}, v{v}, v{v} {mod}")
        s.nop(1)
        for v, sd in zip(vs, sdsts):
            s.e(f"v_readlane_b32 s{sd}, v{v}, 63")
        s.nop(2)
    def text(s, vgpr, sgpr):
        acc = (vgpr + 3) // 4 * 4
        hdr = [f".globl {s.name}", ".p2align 8", f".type {s.name},@function", f"{s.name}:"]
        body = hdr + s.L
        desc = [f".amdhsa_kernel {s.name}",
                f"  .amdhsa_next_free_vgpr {vgpr}",
                f"  .amdhsa_next_free_sgpr {sgpr}",
                f"  .amdhsa_accum_offset {acc}",
                "  .amdhsa_group_segment_fixed_size 0",
                "  .amdhsa_kernarg_size 120",
                "  .amdhsa_user_sgpr_count 2",
                "  .amdhsa_user_sgpr_kernarg_segment_ptr 1",
                "  .amdhsa_system_sgpr_workgroup_id_x 1",
                ".end_amdhsa_kernel"]
        return "\n".join(body), "\n".join(desc)
```

```python
from gen_common import *
from gen_k1 import ln_multi

LDS = 12800

def gen_k0():
    k = Kern("k0_ln1_kernel")
    END = "L_k0_end"
    k.e("s_cmp_ge_u32 s2, 256")
    k.e(f"s_cbranch_scc1 {END}")
    k.e(f"s_load_dwordx2 s[4:5], s[0:1], {KA['x']}")
    k.e(f"s_load_dwordx2 s[6:7], s[0:1], {KA['ws']}")
    k.e("v_and_b32 v1, 63, v0")
    k.e("v_lshrrev_b32 v2, 6, v0")
    k.e("s_mul_i32 s16, s2, 10240")
    k.e("s_waitcnt lgkmcnt(0)")
    k.srd(8, 4, 5, 0, MAT_BYTES)
    k.srd(12, 6, 7, WS_UT, MAT_BYTES)
    k.e("v_lshlrev_b32 v3, 2, v1")
    k.e("v_mul_u32_u24 v11, 2560, v2")
    k.e("v_add_u32 v3, v3, v11")
    for rr in range(2):
        for i in range(5):
            k.e(f"buffer_load_dword v{16+rr*5+i}, v3, s[8:11], s16 offen offset:{rr*1280 + i*256}")
    k.e("v_mul_u32_u24 v12, 40, v1")
    k.e("v_lshlrev_b32 v13, 2, v2")
    k.e("v_add_u32 v12, v12, v13")
    k.e("s_waitcnt vmcnt(0)")
    rows = []
    for rr in range(2):
        xs = [30 + rr * 10 + i for i in range(10)]
        for i in range(5):
            k.e(f"v_lshlrev_b32 v{xs[2*i]}, 16, v{16+rr*5+i}")
            k.e(f"v_and_b32 v{xs[2*i+1]}, 0xffff0000, v{16+rr*5+i}")
        rows.append((xs, [50 + rr * 10 + i for i in range(10)], [70 + rr * 5 + i for i in range(5)]))
    ln_multi(k, rows, [20, 21], False)
    for e in range(10):
        k.e(f"v_cvt_pk_bf16_f32 v70, v{rows[0][1][e]}, v{rows[1][1][e]}")
        k.e(f"ds_write_b32 v12, v70 offset:{(e//2)*2560 + (e%2)*20}")
    k.e("s_waitcnt lgkmcnt(0)")
    k.e("s_barrier")
    k.e("v_mul_u32_u24 v5, 20, v0")
    k.e("v_lshlrev_b32 v7, 4, v0")
    for j in range(3):
        if j > 0:
            k.e("v_add_u32 v5, 5120, v5")
        k.e(f"ds_read2_b32 v[{16+4*j}:{17+4*j}], v5 offset0:0 offset1:1")
        k.e(f"ds_read2_b32 v[{18+4*j}:{19+4*j}], v5 offset0:2 offset1:3")
    k.e("s_waitcnt lgkmcnt(0)")
    for j in range(3):
        if j == 2:
            k.e("v_cmp_gt_u32 vcc, 128, v0")
            k.nop(2)
            k.e("s_and_saveexec_b64 s[18:19], vcc")
        k.e(f"buffer_store_dwordx4 v[{16+4*j}:{19+4*j}], v7, s[12:15], s16 offen offset:{4096*j if j < 1 else 0}" if j == 0 else
            f"buffer_store_dwordx4 v[{16+4*j}:{19+4*j}], v7, s[12:15], s16 offen")
        if j < 2:
            k.e("v_add_u32 v7, 4096, v7")
    k.lab(END)
    k.e("s_endpgm")
    return k, 96, 32
```

```python
from gen_common import *

def ln_multi(k, rows, sAs, round_out):
    def each(fmt):
        for (xs, outs, T) in rows:
            k.e(fmt(xs, outs, T))
    each(lambda xs, o, T: f"v_add_f32 v{T[0]}, v{xs[0]}, v{xs[1]}")
    for i in range(2, 10):
        each(lambda xs, o, T: f"v_add_f32 v{T[0]}, v{T[0]}, v{xs[i]}")
    k.wave_sum_multi([T[0] for (_, _, T) in rows], sAs)
    for (xs, o, T), sA in zip(rows, sAs):
        k.e(f"v_mov_b32 v{T[1]}, s{sA}")
    each(lambda xs, o, T: f"v_mul_f32 v{T[1]}, {flit(1.0/640)}, v{T[1]}")
    each(lambda xs, o, T: f"v_sub_f32 v{T[2]}, v{xs[0]}, v{T[1]}")
    each(lambda xs, o, T: f"v_mul_f32 v{T[0]}, v{T[2]}, v{T[2]}")
    for i in range(1, 10):
        each(lambda xs, o, T: f"v_sub_f32 v{T[2]}, v{xs[i]}, v{T[1]}")
        each(lambda xs, o, T: f"v_fmac_f32 v{T[0]}, v{T[2]}, v{T[2]}")
    k.wave_sum_multi([T[0] for (_, _, T) in rows], sAs)
    for (xs, o, T), sA in zip(rows, sAs):
        k.e(f"v_mov_b32 v{T[2]}, s{sA}")
    each(lambda xs, o, T: f"v_mul_f32 v{T[2]}, {flit(1.0/640)}, v{T[2]}")
    each(lambda xs, o, T: f"v_cvt_pk_bf16_f32 v{T[3]}, v{T[1]}, v{T[1]}")
    each(lambda xs, o, T: f"v_lshlrev_b32 v{T[3]}, 16, v{T[3]}")
    each(lambda xs, o, T: f"v_cvt_pk_bf16_f32 v{T[4]}, v{T[2]}, v{T[2]}")
    each(lambda xs, o, T: f"v_lshlrev_b32 v{T[4]}, 16, v{T[4]}")
    each(lambda xs, o, T: f"v_add_f32 v{T[4]}, {flit(1e-5)}, v{T[4]}")
    each(lambda xs, o, T: f"v_cvt_pk_bf16_f32 v{T[4]}, v{T[4]}, v{T[4]}")
    each(lambda xs, o, T: f"v_lshlrev_b32 v{T[4]}, 16, v{T[4]}")
    each(lambda xs, o, T: f"v_sqrt_f32 v{T[4]}, v{T[4]}")
    k.nop(1)
    each(lambda xs, o, T: f"v_cvt_pk_bf16_f32 v{T[4]}, v{T[4]}, v{T[4]}")
    each(lambda xs, o, T: f"v_lshlrev_b32 v{T[4]}, 16, v{T[4]}")
    each(lambda xs, o, T: f"v_rcp_f32 v{T[0]}, v{T[4]}")
    k.nop(1)
    for i in range(0, 10, 2):
        each(lambda xs, o, T: f"v_sub_f32 v{o[i]}, v{xs[i]}, v{T[3]}")
        each(lambda xs, o, T: f"v_sub_f32 v{o[i+1]}, v{xs[i+1]}, v{T[3]}")
        each(lambda xs, o, T: f"v_cvt_pk_bf16_f32 v{T[2]}, v{o[i]}, v{o[i+1]}")
        each(lambda xs, o, T: f"v_lshlrev_b32 v{o[i]}, 16, v{T[2]}")
        each(lambda xs, o, T: f"v_and_b32 v{o[i+1]}, 0xffff0000, v{T[2]}")
        for j in (i, i + 1):
            each(lambda xs, o, T: f"v_mul_f32 v{T[2]}, v{o[j]}, v{T[0]}")
            each(lambda xs, o, T: f"v_fma_f32 v{o[j]}, -v{T[2]}, v{T[4]}, v{o[j]}")
            each(lambda xs, o, T: f"v_fma_f32 v{o[j]}, v{o[j]}, v{T[0]}, v{T[2]}")
    if round_out:
        for i in range(0, 10, 2):
            each(lambda xs, o, T: f"v_cvt_pk_bf16_f32 v{T[2]}, v{o[i]}, v{o[i+1]}")
            each(lambda xs, o, T: f"v_lshlrev_b32 v{o[i]}, 16, v{T[2]}")
            each(lambda xs, o, T: f"v_and_b32 v{o[i+1]}, 0xffff0000, v{T[2]}")

NLN = 256
LDS = 45088

def gen_k1():
    k = Kern("k1_lnkgen_kernel")
    END = "L_k1_end"; KGEN = "L_k1_kgen"
    k.e(f"s_cmp_ge_u32 s2, {NLN+640}")
    k.e(f"s_cbranch_scc1 {END}")
    k.e(f"s_cmp_ge_u32 s2, {NLN}")
    k.e(f"s_cbranch_scc1 {KGEN}")
    k.e(f"s_load_dwordx2 s[4:5], s[0:1], {KA['x']}")
    k.e(f"s_load_dwordx2 s[6:7], s[0:1], {KA['ws']}")
    k.e("v_and_b32 v1, 63, v0")
    k.e("v_lshrrev_b32 v2, 6, v0")
    k.e("s_mul_i32 s16, s2, 10240")
    k.e("s_waitcnt lgkmcnt(0)")
    k.srd(8, 4, 5, 0, MAT_BYTES)
    k.srd(12, 6, 7, WS_UT, MAT_BYTES)
    k.e("v_lshlrev_b32 v3, 2, v1")
    k.e("v_mul_u32_u24 v11, 2560, v2")
    k.e("v_add_u32 v3, v3, v11")
    for rr in range(2):
        for i in range(5):
            k.e(f"buffer_load_dword v{16+rr*5+i}, v3, s[8:11], s16 offen offset:{rr*1280 + i*256}")
    k.e("v_mul_u32_u24 v12, 40, v1")
    k.e("v_lshlrev_b32 v13, 2, v2")
    k.e("v_add_u32 v12, v12, v13")
    k.e("s_waitcnt vmcnt(0)")
    rows = []
    for rr in range(2):
        xs = [30 + rr * 10 + i for i in range(10)]
        for i in range(5):
            k.e(f"v_lshlrev_b32 v{xs[2*i]}, 16, v{16+rr*5+i}")
            k.e(f"v_and_b32 v{xs[2*i+1]}, 0xffff0000, v{16+rr*5+i}")
        rows.append((xs, [50 + rr * 10 + i for i in range(10)], [70 + rr * 5 + i for i in range(5)]))
    ln_multi(k, rows, [20, 21], False)
    for e in range(10):
        k.e(f"v_cvt_pk_bf16_f32 v70, v{rows[0][1][e]}, v{rows[1][1][e]}")
        k.e(f"ds_write_b32 v12, v70 offset:{(e//2)*2560 + (e%2)*20}")
    k.e("s_waitcnt lgkmcnt(0)")
    k.e("s_barrier")
    k.e("v_mul_u32_u24 v5, 20, v0")
    k.e("v_lshlrev_b32 v7, 12, v0")
    k.e("s_lshl_b32 s17, s2, 4")
    for j in range(3):
        k.e(f"ds_read2_b32 v[{16+4*j}:{17+4*j}], v5 offset0:{(5120*j)//4 if False else 0} offset1:1" if j == 0 else f"v_add_u32 v5, 5120, v5")
        if j > 0:
            k.e(f"ds_read2_b32 v[{16+4*j}:{17+4*j}], v5 offset0:0 offset1:1")
        k.e(f"ds_read2_b32 v[{18+4*j}:{19+4*j}], v5 offset0:2 offset1:3")
    k.e("s_waitcnt lgkmcnt(0)")
    for j in range(3):
        if j == 2:
            k.e("v_cmp_gt_u32 vcc, 128, v0")
            k.nop(2)
            k.e("s_and_saveexec_b64 s[18:19], vcc")
        k.e(f"buffer_store_dwordx4 v[{16+4*j}:{19+4*j}], v7, s[12:15], s17 offen")
        if j < 2:
            k.e("v_add_u32 v7, 0x100000, v7")
    k.e("s_endpgm")
    k.lab(KGEN)
    PAR, PART, FIN, S2048 = 0, 4096, 36864, 45072
    k.e(f"s_sub_u32 s3, s2, {NLN}")
    k.e(f"s_load_dwordx2 s[4:5], s[0:1], {KA['lar']}")
    k.e(f"s_load_dwordx2 s[6:7], s[0:1], {KA['aim']}")
    k.e(f"s_load_dwordx2 s[20:21], s[0:1], {KA['cre']}")
    k.e(f"s_load_dwordx2 s[22:23], s[0:1], {KA['cim']}")
    k.e(f"s_load_dwordx2 s[24:25], s[0:1], {KA['ldt']}")
    k.e(f"s_load_dwordx2 s[26:27], s[0:1], {KA['ws']}")
    k.e("v_and_b32 v1, 63, v0")
    k.e("v_lshrrev_b32 v2, 6, v0")
    k.e("s_waitcnt lgkmcnt(0)")
    k.srd(8, 4, 5, 0, 640*192*2)
    k.srd(12, 6, 7, 0, 640*192*2)
    k.srd(28, 20, 21, 0, 640*192*2)
    k.srd(32, 22, 23, 0, 640*192*2)
    k.srd(36, 24, 25, 0, 640*2)
    k.srd(40, 26, 27, WS_KT, KT_BYTES)
    k.e("v_mul_u32_u24 v3, 48, v2")
    k.e("v_add_u32 v3, v3, v1")
    k.e("s_mul_i32 s16, s3, 384")
    k.e("v_lshlrev_b32 v4, 1, v3")
    k.e("buffer_load_ushort v10, v4, s[8:11], s16 offen")
    k.e("buffer_load_ushort v11, v4, s[12:15], s16 offen")
    k.e("buffer_load_ushort v12, v4, s[28:31], s16 offen")
    k.e("buffer_load_ushort v13, v4, s[32:35], s16 offen")
    k.e("s_lshl_b32 s17, s3, 1")
    k.e("v_mov_b32 v5, 0")
    k.e("buffer_load_ushort v14, v5, s[36:39], s17 offen")
    k.e("s_waitcnt vmcnt(0)")
    for r in (10, 11, 12, 13, 14):
        k.e(f"v_lshlrev_b32 v{r}, 16, v{r}")
    k.e(f"v_mul_f32 v14, {flit(LOG2E)}, v14")
    k.e("v_exp_f32 v14, v14")
    k.e(f"v_mul_f32 v10, {flit(LOG2E)}, v10")
    k.e("v_exp_f32 v10, v10")
    k.nop(1)
    k.e("v_cvt_pk_bf16_f32 v14, v14, v14")
    k.e("v_lshlrev_b32 v14, 16, v14")
    k.e("v_cvt_pk_bf16_f32 v10, v10, v10")
    k.e("v_lshlrev_b32 v10, 16, v10")
    k.e("v_mul_f32 v10, v10, v14")
    k.e(f"v_mul_f32 v16, {flit(-LOG2E)}, v10")
    k.e("v_mul_f32 v11, v11, v14")
    k.e(f"v_mul_f32 v17, {flit(INV2PI)}, v11")
    k.e("v_mul_f32 v18, v12, v14")
    k.e("v_add_f32 v18, v18, v18")
    k.e("v_mul_f32 v19, v13, v14")
    k.e("v_add_f32 v19, v19, v19")
    k.e(f"v_mul_f32 v20, 0x45000000, v16")
    k.e("v_exp_f32 v20, v20")
    k.e(f"v_mul_f32 v21, 0x45000000, v17")
    k.e("v_fract_f32 v21, v21")
    k.e("v_sin_f32 v22, v21")
    k.e("v_cos_f32 v23, v21")
    k.nop(1)
    k.e("v_mul_f32 v24, v18, v23")
    k.e("v_fma_f32 v24, -v19, v22, v24")
    k.e("v_mul_f32 v24, v24, v20")
    k.e("v_cmp_gt_u32 vcc, 48, v1")
    k.nop(2)
    k.e("v_cndmask_b32 v24, 0, v24, vcc")
    k.e("s_and_saveexec_b64 s[44:45], vcc")
    k.e("v_lshlrev_b32 v5, 4, v3")
    k.e(f"ds_write_b128 v5, v[16:19] offset:{PAR}")
    k.e("s_mov_b64 exec, s[44:45]")
    k.wave_sum(24, 46)
    k.e("v_mov_b32 v24, s46")
    k.e("v_lshlrev_b32 v5, 2, v2")
    k.e(f"ds_write_b32 v5, v24 offset:{S2048}")
    k.e("s_waitcnt lgkmcnt(0)")
    k.e("v_and_b32 v4, 31, v1")
    k.e("v_lshrrev_b32 v5, 5, v1")
    k.e("v_cvt_f32_u32 v6, v4")
    k.e("v_lshlrev_b32 v7, 5, v4")
    k.e("v_cvt_f32_u32 v7, v7")
    k.e(f"v_add_f32 v8, 0x44800000, v7")
    k.e("v_mul_u32_u24 v9, 48, v2")
    k.e("v_lshlrev_b32 v10, 2, v5")
    k.e("v_add_u32 v9, v9, v10")
    k.e("v_lshlrev_b32 v9, 4, v9")
    ACC = [128, 144]
    for T_ in range(2):
        for r in range(16):
            k.e(f"v_mov_b32 v{ACC[T_]+r}, 0")
    PR = 32
    BH, BL, AH0, AL0, AH1, AL1 = 48, 52, 56, 60, 64, 68
    TB = 80
    def tj(jj, i):
        return TB + 8 * jj + i
    J = range(4)
    def cexp4(pf):
        for jj in J: k.e(f"v_mul_f32 v{tj(jj,0)}, v{PR+4*jj}, v{pf}")
        for jj in J: k.e(f"v_mul_f32 v{tj(jj,1)}, v{PR+4*jj+1}, v{pf}")
        for jj in J: k.e(f"v_exp_f32 v{tj(jj,0)}, v{tj(jj,0)}")
        for jj in J: k.e(f"v_fract_f32 v{tj(jj,1)}, v{tj(jj,1)}")
        for jj in J: k.e(f"v_sin_f32 v{tj(jj,2)}, v{tj(jj,1)}")
        for jj in J: k.e(f"v_cos_f32 v{tj(jj,3)}, v{tj(jj,1)}")
    def split4(DH, DL):
        for jj in J: k.e(f"v_cvt_pk_bf16_f32 v{DH+jj}, v{tj(jj,4)}, v{tj(jj,5)}")
        for jj in J: k.e(f"v_lshlrev_b32 v{tj(jj,6)}, 16, v{DH+jj}")
        for jj in J: k.e(f"v_and_b32 v{tj(jj,7)}, 0xffff0000, v{DH+jj}")
        for jj in J: k.e(f"v_sub_f32 v{tj(jj,6)}, v{tj(jj,4)}, v{tj(jj,6)}")
        for jj in J: k.e(f"v_sub_f32 v{tj(jj,7)}, v{tj(jj,5)}, v{tj(jj,7)}")
        for jj in J: k.e(f"v_cvt_pk_bf16_f32 v{DL+jj}, v{tj(jj,6)}, v{tj(jj,7)}")
    for kk in range(6):
        for jj in J:
            k.e(f"ds_read_b128 v[{PR+4*jj}:{PR+4*jj+3}], v9 offset:{PAR + (8*kk+jj)*16}")
        k.e("s_waitcnt lgkmcnt(0)")
        cexp4(6)
        for jj in J: k.e(f"v_mul_f32 v{tj(jj,4)}, v{PR+4*jj+2}, v{tj(jj,3)}")
        for jj in J: k.e(f"v_mul_f32 v{tj(jj,5)}, v{PR+4*jj+2}, v{tj(jj,2)}")
        for jj in J: k.e(f"v_fma_f32 v{tj(jj,4)}, -v{PR+4*jj+3}, v{tj(jj,2)}, v{tj(jj,4)}")
        for jj in J: k.e(f"v_fma_f32 v{tj(jj,5)}, v{PR+4*jj+3}, v{tj(jj,3)}, v{tj(jj,5)}")
        for jj in J: k.e(f"v_mul_f32 v{tj(jj,4)}, v{tj(jj,4)}, v{tj(jj,0)}")
        for jj in J: k.e(f"v_mul_f32 v{tj(jj,5)}, -v{tj(jj,5)}, v{tj(jj,0)}")
        split4(BH, BL)
        for (pf, AH, AL) in ((7, AH0, AL0), (8, AH1, AL1)):
            cexp4(pf)
            for jj in J: k.e(f"v_mul_f32 v{tj(jj,4)}, v{tj(jj,3)}, v{tj(jj,0)}")
            for jj in J: k.e(f"v_mul_f32 v{tj(jj,5)}, v{tj(jj,2)}, v{tj(jj,0)}")
            split4(AH, AL)
        k.nop(2)
        for (T_, AH, AL) in ((0, AH0, AL0), (1, AH1, AL1)):
            a = ACC[T_]
            k.e(f"v_mfma_f32_32x32x16_bf16 v[{a}:{a+15}], v[{AH}:{AH+3}], v[{BH}:{BH+3}], v[{a}:{a+15}]")
            k.e(f"v_mfma_f32_32x32x16_bf16 v[{a}:{a+15}], v[{AH}:{AH+3}], v[{BL}:{BL+3}], v[{a}:{a+15}]")
            k.e(f"v_mfma_f32_32x32x16_bf16 v[{a}:{a+15}], v[{AL}:{AL+3}], v[{BH}:{BH+3}], v[{a}:{a+15}]")
    k.nop(16)
    k.e("v_lshlrev_b32 v9, 13, v2")
    k.e("v_lshlrev_b32 v10, 9, v5")
    k.e("v_add_u32 v9, v9, v10")
    k.e("v_lshlrev_b32 v10, 2, v4")
    k.e("v_add_u32 v9, v9, v10")
    for T_ in range(2):
        for r in range(16):
            k.e(f"ds_write_b32 v9, v{ACC[T_]+r} offset:{PART + 128*(32*T_ + 8*(r>>2) + (r&3))}")
    k.e("s_waitcnt lgkmcnt(0)")
    k.e("s_barrier")
    k.e("v_lshlrev_b32 v9, 5, v0")
    for w_ in range(4):
        k.e(f"ds_read_b128 v[{32+8*w_}:{35+8*w_}], v9 offset:{PART + 8192*w_}")
        k.e(f"ds_read_b128 v[{36+8*w_}:{39+8*w_}], v9 offset:{PART + 8192*w_ + 16}")
    k.e("v_mov_b32 v10, 0")
    k.e(f"ds_read_b128 v[64:67], v10 offset:{S2048}")
    k.e("s_waitcnt lgkmcnt(0)")
    for i in range(8):
        k.e(f"v_add_f32 v{32+i}, v{32+i}, v{40+i}")
        k.e(f"v_add_f32 v{48+i}, v{48+i}, v{56+i}")
        k.e(f"v_add_f32 v{32+i}, v{32+i}, v{48+i}")
    k.e(f"ds_write_b128 v9, v[32:35] offset:{FIN}")
    k.e(f"ds_write_b128 v9, v[36:39] offset:{FIN+16}")
    k.e("v_add_f32 v64, v64, v65")
    k.e("v_add_f32 v66, v66, v67")
    k.e("v_add_f32 v64, v64, v66")
    k.e(f"ds_write_b32 v10, v64 offset:{FIN+8192}")
    k.e("s_waitcnt lgkmcnt(0)")
    k.e("s_barrier")
    k.e("s_mul_i32 s16, s3, 16640")
    for it in range(5):
        k.e(f"v_add_u32 v3, {256*it}, v0")
        k.e("v_lshlrev_b32 v4, 1, v3")
        for q in range(3):
            k.e(f"v_add_u32 v{10+q}, {q}, v4")
            k.e(f"v_subrev_u32 v{10+q}, 31, v{10+q}")
        for q in range(3):
            k.e(f"v_cmp_gt_u32 s[{48+2*q}:{49+2*q}], 2048, v{10+q}" if False else f"v_cmp_gt_u32 vcc, 2048, v{10+q}")
            k.nop(2)
            k.e(f"v_cndmask_b32 v{13+q}, 0, v{10+q}, vcc")
            k.e(f"v_cvt_f32_u32 v{13+q}, v{13+q}")
            k.e(f"v_cvt_pk_bf16_f32 v{13+q}, v{13+q}, v{13+q}")
            k.e(f"v_lshlrev_b32 v{13+q}, 16, v{13+q}")
            k.e(f"v_cvt_u32_f32 v{13+q}, v{13+q}")
            k.e(f"v_lshlrev_b32 v{13+q}, 2, v{13+q}")
            k.e(f"ds_read_b32 v{16+q}, v{13+q} offset:{FIN}")
            k.e("s_waitcnt lgkmcnt(0)")
            k.e(f"v_cndmask_b32 v{16+q}, 0, v{16+q}, vcc")
        k.e("v_cvt_pk_bf16_f32 v20, v16, v17")
        k.e("v_cvt_pk_bf16_f32 v21, v17, v18")
        k.e("v_lshlrev_b32 v22, 16, v20")
        k.e("v_and_b32 v23, 0xffff0000, v20")
        k.e("v_and_b32 v24, 0xffff0000, v21")
        k.e("v_sub_f32 v22, v16, v22")
        k.e("v_sub_f32 v23, v17, v23")
        k.e("v_sub_f32 v24, v18, v24")
        k.e("v_cvt_pk_bf16_f32 v25, v22, v23")
        k.e("v_cvt_pk_bf16_f32 v26, v23, v24")
        k.e("v_lshlrev_b32 v4, 2, v3")
        if it == 4:
            k.e("v_cmp_gt_u32 vcc, 1040, v3")
            k.nop(2)
            k.e("s_and_saveexec_b64 s[44:45], vcc")
        k.e("buffer_store_dword v20, v4, s[40:43], s16 offen")
        k.e("v_add_u32 v5, 4160, v4")
        k.e("buffer_store_dword v21, v5, s[40:43], s16 offen")
        k.e("v_add_u32 v5, 8320, v4")
        k.e("buffer_store_dword v25, v5, s[40:43], s16 offen")
        k.e("v_add_u32 v5, 12480, v4")
        k.e("buffer_store_dword v26, v5, s[40:43], s16 offen")
        if it == 4:
            k.e("s_mov_b64 exec, s[44:45]")
    k.lab(END)
    k.e("s_endpgm")
    return k, 160, 56
```

```python
from gen_common import *
from gen_k1 import ln_multi

LDS = 12800

def gen_k3():
    k = Kern("k3_ln2_kernel")
    END = "L_k3_end"
    k.e("s_cmp_ge_u32 s2, 256")
    k.e(f"s_cbranch_scc1 {END}")
    k.e(f"s_load_dwordx2 s[4:5], s[0:1], {KA['x']}")
    k.e(f"s_load_dwordx2 s[6:7], s[0:1], {KA['ws']}")
    k.e("v_and_b32 v1, 63, v0")
    k.e("v_lshrrev_b32 v2, 6, v0")
    k.e("s_mul_i32 s16, s2, 10240")
    k.e("s_lshl_b32 s17, s2, 4")
    k.e("s_waitcnt lgkmcnt(0)")
    k.srd(8, 4, 5, 0, MAT_BYTES)
    k.srd(12, 6, 7, WS_SSM, MAT_BYTES)
    k.srd(20, 6, 7, WS_H, MAT_BYTES)
    k.srd(24, 6, 7, WS_HLN, MAT_BYTES)
    k.e("v_mul_u32_u24 v5, 20, v0")
    k.e("v_lshlrev_b32 v7, 4, v0")
    for j in range(3):
        k.e(f"buffer_load_dwordx4 v[{56+4*j}:{59+4*j}], v7, s[12:15], s16 offen")
        if j < 2:
            k.e("v_add_u32 v7, 4096, v7")
    k.e("v_lshlrev_b32 v3, 2, v1")
    k.e("v_mul_u32_u24 v11, 2560, v2")
    k.e("v_add_u32 v3, v3, v11")
    for rr in range(2):
        for i in range(5):
            k.e(f"buffer_load_dword v{16+rr*5+i}, v3, s[8:11], s16 offen offset:{rr*1280 + i*256}")
    k.e("s_waitcnt vmcnt(10)")
    for j in range(3):
        if j == 2:
            k.e("v_cmp_gt_u32 vcc, 128, v0")
            k.nop(2)
            k.e("s_and_saveexec_b64 s[18:19], vcc")
        k.e(f"ds_write2_b32 v5, v{56+4*j}, v{57+4*j} offset0:0 offset1:1")
        k.e(f"ds_write2_b32 v5, v{58+4*j}, v{59+4*j} offset0:2 offset1:3")
        if j < 2:
            k.e("v_add_u32 v5, 5120, v5")
    k.e("s_mov_b64 exec, s[18:19]")
    k.e("s_waitcnt lgkmcnt(0)")
    k.e("s_barrier")
    k.e("v_mul_u32_u24 v12, 40, v1")
    k.e("v_lshlrev_b32 v13, 2, v2")
    k.e("v_add_u32 v12, v12, v13")
    for e in range(10):
        k.e(f"ds_read_b32 v{100+e}, v12 offset:{(e//2)*2560 + (e%2)*20}")
    k.e("s_waitcnt vmcnt(0) lgkmcnt(0)")
    rows = []
    for rr in range(2):
        hs = [30 + rr * 10 + i for i in range(10)]
        for i in range(10):
            src = 16 + rr * 5 + i // 2
            if i % 2 == 0:
                k.e(f"v_lshlrev_b32 v{hs[i]}, 16, v{src}")
            else:
                k.e(f"v_and_b32 v{hs[i]}, 0xffff0000, v{src}")
            if rr == 0:
                k.e(f"v_lshlrev_b32 v110, 16, v{100+i}")
            else:
                k.e(f"v_and_b32 v110, 0xffff0000, v{100+i}")
            k.e(f"v_add_f32 v{hs[i]}, v{hs[i]}, v110")
        for i in range(5):
            k.e(f"v_cvt_pk_bf16_f32 v110, v{hs[2*i]}, v{hs[2*i+1]}")
            k.e(f"buffer_store_dword v110, v3, s[20:23], s16 offen offset:{rr*1280 + i*256}")
            k.e(f"v_lshlrev_b32 v{hs[2*i]}, 16, v110")
            k.e(f"v_and_b32 v{hs[2*i+1]}, 0xffff0000, v110")
        rows.append((hs, [50 + rr * 10 + i for i in range(10)], [70 + rr * 5 + i for i in range(5)]))
    ln_multi(k, rows, [28, 29], True)
    rows2 = [(r[1], [80 + rr * 10 + i for i in range(10)], r[2]) for rr, r in enumerate(rows)]
    ln_multi(k, rows2, [28, 29], False)
    for rr in range(2):
        o2 = rows2[rr][1]
        for i in range(5):
            k.e(f"v_cvt_pk_bf16_f32 v110, v{o2[2*i]}, v{o2[2*i+1]}")
            k.e(f"buffer_store_dword v110, v3, s[24:27], s16 offen offset:{rr*1280 + i*256}")
    k.lab(END)
    k.e("s_endpgm")
    return k, 112, 32
```

```python
from gen_common import *

ACCR, PAR, KTL, UR = 0, 36864, 39936, 56576
LDS = 64192

def zero_accr(k):
    k.e("v_mov_b32 v36, 0"); k.e("v_mov_b32 v37, 0"); k.e("v_mov_b32 v38, 0"); k.e("v_mov_b32 v39, 0")
    k.e("v_lshlrev_b32 v47, 4, v0")
    k.e(f"ds_write_b128 v47, v[36:39] offset:{ACCR}")
    k.e(f"ds_write_b128 v47, v[36:39] offset:{ACCR+4096}")
    k.e("v_cmp_gt_u32 vcc, 64, v0")
    k.nop(2)
    k.e("s_and_saveexec_b64 s[44:45], vcc")
    k.e(f"ds_write_b128 v47, v[36:39] offset:{ACCR+8192}")
    k.e("s_mov_b64 exec, s[44:45]")

def gen_kc():
    k = Kern("kc_kgenconv_kernel")
    END = "L_kc_end"
    k.e("s_cmp_ge_u32 s2, 640")
    k.e(f"s_cbranch_scc1 {END}")
    k.e(f"s_load_dwordx2 s[4:5], s[0:1], {KA['lar']}")
    k.e(f"s_load_dwordx2 s[6:7], s[0:1], {KA['aim']}")
    k.e(f"s_load_dwordx2 s[20:21], s[0:1], {KA['cre']}")
    k.e(f"s_load_dwordx2 s[22:23], s[0:1], {KA['cim']}")
    k.e(f"s_load_dwordx2 s[24:25], s[0:1], {KA['ldt']}")
    k.e(f"s_load_dwordx2 s[26:27], s[0:1], {KA['ws']}")
    k.e(f"s_load_dwordx2 s[48:49], s[0:1], {KA['dsk']}")
    k.e("v_and_b32 v1, 63, v0")
    k.e("v_lshrrev_b32 v2, 6, v0")
    k.e("s_waitcnt lgkmcnt(0)")
    k.srd(8, 4, 5, 0, 640*192*2)
    k.srd(12, 6, 7, 0, 640*192*2)
    k.srd(28, 20, 21, 0, 640*192*2)
    k.srd(32, 22, 23, 0, 640*192*2)
    k.srd(36, 24, 25, 0, 640*2)
    k.srd(40, 26, 27, WS_UT, MAT_BYTES)
    k.srd(52, 26, 27, WS_SSM, MAT_BYTES)
    k.srd(56, 48, 49, 0, 1280)
    k.e("v_mul_u32_u24 v3, 48, v2")
    k.e("v_add_u32 v3, v3, v1")
    k.e("s_mul_i32 s16, s2, 384")
    k.e("v_lshlrev_b32 v4, 1, v3")
    k.e("buffer_load_ushort v10, v4, s[8:11], s16 offen")
    k.e("buffer_load_ushort v11, v4, s[12:15], s16 offen")
    k.e("buffer_load_ushort v12, v4, s[28:31], s16 offen")
    k.e("buffer_load_ushort v13, v4, s[32:35], s16 offen")
    k.e("s_lshl_b32 s17, s2, 1")
    k.e("v_mov_b32 v5, 0")
    k.e("buffer_load_ushort v14, v5, s[36:39], s17 offen")
    k.e("buffer_load_ushort v164, v5, s[56:59], s17 offen")
    k.e("s_lshl_b32 s18, s2, 4")
    k.e("v_mul_u32_u24 v165, 10240, v0")
    k.e("buffer_load_dwordx4 v[160:163], v165, s[40:43], s18 offen")
    k.e("s_waitcnt vmcnt(2)")
    for r in (10, 11, 12, 13, 14):
        k.e(f"v_lshlrev_b32 v{r}, 16, v{r}")
    k.e(f"v_mul_f32 v14, {flit(LOG2E)}, v14")
    k.e("v_exp_f32 v14, v14")
    k.e(f"v_mul_f32 v10, {flit(LOG2E)}, v10")
    k.e("v_exp_f32 v10, v10")
    k.nop(1)
    k.e("v_cvt_pk_bf16_f32 v14, v14, v14")
    k.e("v_lshlrev_b32 v14, 16, v14")
    k.e("v_cvt_pk_bf16_f32 v10, v10, v10")
    k.e("v_lshlrev_b32 v10, 16, v10")
    k.e("v_mul_f32 v10, v10, v14")
    k.e(f"v_mul_f32 v16, {flit(-LOG2E)}, v10")
    k.e("v_mul_f32 v11, v11, v14")
    k.e(f"v_mul_f32 v17, {flit(INV2PI)}, v11")
    k.e("v_mul_f32 v18, v12, v14")
    k.e("v_add_f32 v18, v18, v18")
    k.e("v_mul_f32 v19, v13, v14")
    k.e("v_add_f32 v19, v19, v19")
    k.e(f"v_mul_f32 v20, 0x45000000, v16")
    k.e("v_exp_f32 v20, v20")
    k.e(f"v_mul_f32 v21, 0x45000000, v17")
    k.e("v_fract_f32 v21, v21")
    k.e("v_sin_f32 v22, v21")
    k.e("v_cos_f32 v23, v21")
    k.nop(1)
    k.e("v_mul_f32 v24, v18, v23")
    k.e("v_fma_f32 v24, -v19, v22, v24")
    k.e("v_mul_f32 v24, v24, v20")
    k.e("v_cmp_gt_u32 vcc, 48, v1")
    k.nop(2)
    k.e("v_cndmask_b32 v24, 0, v24, vcc")
    k.e("s_and_saveexec_b64 s[44:45], vcc")
    k.e("v_lshlrev_b32 v5, 4, v3")
    k.e(f"ds_write_b128 v5, v[16:19] offset:{PAR}")
    k.e("s_mov_b64 exec, s[44:45]")
    k.wave_sum(24, 46)
    k.e("s_waitcnt lgkmcnt(0)")
    k.e("s_barrier")
    k.e("v_and_b32 v4, 31, v1")
    k.e("v_lshrrev_b32 v5, 5, v1")
    k.e("v_cvt_f32_u32 v6, v4")
    k.e("v_lshlrev_b32 v7, 5, v4")
    k.e("v_cvt_f32_u32 v7, v7")
    k.e(f"v_add_f32 v8, 0x44800000, v7")
    k.e("v_mul_u32_u24 v9, 48, v2")
    k.e("v_lshlrev_b32 v10, 2, v5")
    k.e("v_add_u32 v9, v9, v10")
    k.e("v_lshlrev_b32 v9, 4, v9")
    ACC = [128, 144]
    for T_ in range(2):
        for r in range(16):
            k.e(f"v_mov_b32 v{ACC[T_]+r}, 0")
    PR = 32
    BH, BL, AH0, AL0, AH1, AL1 = 48, 52, 56, 60, 64, 68
    TB = 80
    def tj(jj, i):
        return TB + 8 * jj + i
    J = range(4)
    def cexp4(pf):
        for jj in J: k.e(f"v_mul_f32 v{tj(jj,0)}, v{PR+4*jj}, v{pf}")
        for jj in J: k.e(f"v_mul_f32 v{tj(jj,1)}, v{PR+4*jj+1}, v{pf}")
        for jj in J: k.e(f"v_exp_f32 v{tj(jj,0)}, v{tj(jj,0)}")
        for jj in J: k.e(f"v_fract_f32 v{tj(jj,1)}, v{tj(jj,1)}")
        for jj in J: k.e(f"v_sin_f32 v{tj(jj,2)}, v{tj(jj,1)}")
        for jj in J: k.e(f"v_cos_f32 v{tj(jj,3)}, v{tj(jj,1)}")
    def split4(DH, DL):
        for jj in J: k.e(f"v_cvt_pk_bf16_f32 v{DH+jj}, v{tj(jj,4)}, v{tj(jj,5)}")
        for jj in J: k.e(f"v_lshlrev_b32 v{tj(jj,6)}, 16, v{DH+jj}")
        for jj in J: k.e(f"v_and_b32 v{tj(jj,7)}, 0xffff0000, v{DH+jj}")
        for jj in J: k.e(f"v_sub_f32 v{tj(jj,6)}, v{tj(jj,4)}, v{tj(jj,6)}")
        for jj in J: k.e(f"v_sub_f32 v{tj(jj,7)}, v{tj(jj,5)}, v{tj(jj,7)}")
        for jj in J: k.e(f"v_cvt_pk_bf16_f32 v{DL+jj}, v{tj(jj,6)}, v{tj(jj,7)}")
    for kk in range(6):
        for jj in J:
            k.e(f"ds_read_b128 v[{PR+4*jj}:{PR+4*jj+3}], v9 offset:{PAR + (8*kk+jj)*16}")
        k.e("s_waitcnt lgkmcnt(0)")
        cexp4(6)
        for jj in J: k.e(f"v_mul_f32 v{tj(jj,4)}, v{PR+4*jj+2}, v{tj(jj,3)}")
        for jj in J: k.e(f"v_mul_f32 v{tj(jj,5)}, v{PR+4*jj+2}, v{tj(jj,2)}")
        for jj in J: k.e(f"v_fma_f32 v{tj(jj,4)}, -v{PR+4*jj+3}, v{tj(jj,2)}, v{tj(jj,4)}")
        for jj in J: k.e(f"v_fma_f32 v{tj(jj,5)}, v{PR+4*jj+3}, v{tj(jj,3)}, v{tj(jj,5)}")
        for jj in J: k.e(f"v_mul_f32 v{tj(jj,4)}, v{tj(jj,4)}, v{tj(jj,0)}")
        for jj in J: k.e(f"v_mul_f32 v{tj(jj,5)}, -v{tj(jj,5)}, v{tj(jj,0)}")
        split4(BH, BL)
        for (pf, AH, AL) in ((7, AH0, AL0), (8, AH1, AL1)):
            cexp4(pf)
            for jj in J: k.e(f"v_mul_f32 v{tj(jj,4)}, v{tj(jj,3)}, v{tj(jj,0)}")
            for jj in J: k.e(f"v_mul_f32 v{tj(jj,5)}, v{tj(jj,2)}, v{tj(jj,0)}")
            split4(AH, AL)
        k.nop(2)
        for (T_, AH, AL) in ((0, AH0, AL0), (1, AH1, AL1)):
            a = ACC[T_]
            k.e(f"v_mfma_f32_32x32x16_bf16 v[{a}:{a+15}], v[{AH}:{AH+3}], v[{BH}:{BH+3}], v[{a}:{a+15}]")
            k.e(f"v_mfma_f32_32x32x16_bf16 v[{a}:{a+15}], v[{AH}:{AH+3}], v[{BL}:{BL+3}], v[{a}:{a+15}]")
            k.e(f"v_mfma_f32_32x32x16_bf16 v[{a}:{a+15}], v[{AL}:{AL+3}], v[{BH}:{BH+3}], v[{a}:{a+15}]")
    k.nop(16)
    k.e("v_lshlrev_b32 v10, 9, v5")
    k.e("v_lshlrev_b32 v9, 2, v4")
    k.e("v_add_u32 v9, v9, v10")
    k.e("v_mul_u32_u24 v10, 9216, v2")
    k.e("v_add_u32 v9, v9, v10")
    for T_ in range(2):
        for r in range(16):
            k.e(f"ds_write_b32 v9, v{ACC[T_]+r} offset:{ACCR + 128*(32*T_ + 8*(r>>2) + (r&3))}")
    k.e("v_mov_b32 v24, s46")
    k.e(f"ds_write_b32 v10, v24 offset:{ACCR+8192}")
    k.e("s_waitcnt lgkmcnt(0)")
    k.e("s_barrier")
    k.e("v_lshlrev_b32 v9, 5, v0")
    for w_ in range(4):
        k.e(f"ds_read_b128 v[{32+8*w_}:{35+8*w_}], v9 offset:{ACCR + 9216*w_}")
        k.e(f"ds_read_b128 v[{36+8*w_}:{39+8*w_}], v9 offset:{ACCR + 9216*w_ + 16}")
    k.e("v_mov_b32 v10, 0")
    for w_ in range(4):
        k.e(f"ds_read_b32 v{64+w_}, v10 offset:{ACCR + 9216*w_ + 8192}")
    k.e("s_waitcnt lgkmcnt(0)")
    for i in range(8):
        k.e(f"v_add_f32 v{32+i}, v{32+i}, v{40+i}")
        k.e(f"v_add_f32 v{48+i}, v{48+i}, v{56+i}")
        k.e(f"v_add_f32 v{32+i}, v{32+i}, v{48+i}")
    k.e(f"ds_write_b128 v9, v[32:35] offset:{ACCR}")
    k.e(f"ds_write_b128 v9, v[36:39] offset:{ACCR+16}")
    k.e("v_add_f32 v64, v64, v65")
    k.e("v_add_f32 v66, v66, v67")
    k.e("v_add_f32 v64, v64, v66")
    k.e(f"ds_write_b32 v10, v64 offset:{ACCR+8192}")
    k.e("s_waitcnt lgkmcnt(0)")
    k.e("s_barrier")
    for it in range(5):
        k.e(f"v_add_u32 v3, {256*it}, v0")
        k.e("v_lshlrev_b32 v4, 1, v3")
        for q in range(3):
            k.e(f"v_add_u32 v{10+q}, {q}, v4")
            k.e(f"v_subrev_u32 v{10+q}, 31, v{10+q}")
        for q in range(3):
            k.e(f"v_cmp_gt_u32 vcc, 2048, v{10+q}")
            k.nop(2)
            k.e(f"v_cndmask_b32 v{13+q}, 0, v{10+q}, vcc")
            k.e(f"v_cvt_f32_u32 v{13+q}, v{13+q}")
            k.e(f"v_cvt_pk_bf16_f32 v{13+q}, v{13+q}, v{13+q}")
            k.e(f"v_lshlrev_b32 v{13+q}, 16, v{13+q}")
            k.e(f"v_cvt_u32_f32 v{13+q}, v{13+q}")
            k.e(f"v_lshlrev_b32 v{13+q}, 2, v{13+q}")
            k.e(f"ds_read_b32 v{16+q}, v{13+q} offset:{ACCR}")
            k.e("s_waitcnt lgkmcnt(0)")
            k.e(f"v_cndmask_b32 v{16+q}, 0, v{16+q}, vcc")
        k.e("v_cvt_pk_bf16_f32 v20, v16, v17")
        k.e("v_cvt_pk_bf16_f32 v21, v17, v18")
        k.e("v_lshlrev_b32 v22, 16, v20")
        k.e("v_and_b32 v23, 0xffff0000, v20")
        k.e("v_and_b32 v24, 0xffff0000, v21")
        k.e("v_sub_f32 v22, v16, v22")
        k.e("v_sub_f32 v23, v17, v23")
        k.e("v_sub_f32 v24, v18, v24")
        k.e("v_cvt_pk_bf16_f32 v25, v22, v23")
        k.e("v_cvt_pk_bf16_f32 v26, v23, v24")
        k.e("v_lshlrev_b32 v4, 2, v3")
        if it == 4:
            k.e("v_cmp_gt_u32 vcc, 1040, v3")
            k.nop(2)
            k.e("s_and_saveexec_b64 s[44:45], vcc")
        k.e(f"ds_write_b32 v4, v20 offset:{KTL}")
        k.e(f"ds_write_b32 v4, v21 offset:{KTL+4160}")
        k.e(f"ds_write_b32 v4, v25 offset:{KTL+8320}")
        k.e(f"ds_write_b32 v4, v26 offset:{KTL+12480}")
        if it == 4:
            k.e("s_mov_b64 exec, s[44:45]")
    k.e("v_lshrrev_b32 v4, 2, v0")
    k.e("v_mul_u32_u24 v4, 80, v4")
    k.e("v_and_b32 v6, 3, v0")
    k.e("v_lshlrev_b32 v6, 4, v6")
    k.e("v_add_u32 v4, v4, v6")
    k.e("v_mov_b32 v36, 0"); k.e("v_mov_b32 v37, 0"); k.e("v_mov_b32 v38, 0"); k.e("v_mov_b32 v39, 0")
    k.e("v_cmp_gt_u32 vcc, 124, v0")
    k.nop(2)
    k.e("s_and_saveexec_b64 s[44:45], vcc")
    k.e(f"ds_write_b128 v4, v[36:39] offset:{UR + 64*80}")
    k.e("s_mov_b64 exec, s[44:45]")
    k.e("s_waitcnt vmcnt(0)")
    for j in range(4):
        k.e(f"v_alignbit_b32 v{40+j}, v{163-j}, v{163-j}, 16")
    k.e("v_lshlrev_b32 v4, 3, v0")
    k.e("v_sub_u32 v4, 2040, v4")
    k.e("v_lshrrev_b32 v6, 5, v4")
    k.e("v_mul_u32_u24 v6, 80, v6")
    k.e("v_and_b32 v4, 31, v4")
    k.e("v_lshlrev_b32 v4, 1, v4")
    k.e("v_add_u32 v4, v4, v6")
    k.e(f"ds_write_b128 v4, v[40:43] offset:{UR}")
    k.e("s_waitcnt lgkmcnt(0)")
    k.e("s_barrier")
    k.e("v_and_b32 v4, 31, v1")
    k.e("v_lshrrev_b32 v5, 5, v1")
    k.e("v_and_b32 v6, 1, v4")
    k.e("v_mul_u32_u24 v6, 4160, v6")
    k.e("v_and_b32 v7, 30, v4")
    k.e("v_lshlrev_b32 v7, 1, v7")
    k.e("v_add_u32 v6, v6, v7")
    k.e("v_lshlrev_b32 v7, 4, v5")
    k.e("v_add_u32 v6, v6, v7")
    k.e("v_lshlrev_b32 v8, 6, v2")
    k.e("v_add_u32 v6, v6, v8")
    k.e(f"v_add_u32 v6, {KTL}, v6")
    k.e("v_add_u32 v8, 8320, v6")
    k.e("v_sub_u32 v9, 31, v4")
    k.e("v_mul_u32_u24 v9, 80, v9")
    k.e("v_add_u32 v9, v9, v7")
    k.e("v_mul_u32_u24 v10, 80, v2")
    k.e("v_add_u32 v9, v9, v10")
    k.e(f"v_add_u32 v9, {UR}, v9")
    k.e("v_add_u32 v10, 2560, v9")
    ACC1, ACC0 = 64, 80
    for r in range(16):
        k.e(f"v_mov_b32 v{ACC1+r}, 0")
        k.e(f"v_mov_b32 v{ACC0+r}, 0")
    SETS = [96, 112]
    def reads(s):
        i, h = s >> 1, s & 1
        b = SETS[s & 1]
        k.e(f"ds_read2_b32 v[{b}:{b+1}], v6 offset0:{8*h} offset1:{8*h+1}")
        k.e(f"ds_read2_b32 v[{b+2}:{b+3}], v6 offset0:{8*h+2} offset1:{8*h+3}")
        k.e(f"ds_read2_b32 v[{b+4}:{b+5}], v8 offset0:{8*h} offset1:{8*h+1}")
        k.e(f"ds_read2_b32 v[{b+6}:{b+7}], v8 offset0:{8*h+2} offset1:{8*h+3}")
        k.e(f"ds_read_b128 v[{b+8}:{b+11}], v9 offset:{320*i + 32*h}")
        n = 5
        if i < 8:
            k.e(f"ds_read_b128 v[{b+12}:{b+15}], v10 offset:{320*i + 32*h}")
            n = 6
        if h == 1:
            k.e("v_add_u32 v6, 256, v6")
            k.e("v_add_u32 v8, 256, v8")
        return n
    def mfmas(s):
        i = s >> 1
        b = SETS[s & 1]
        k.e(f"v_mfma_f32_32x32x16_bf16 v[{ACC1}:{ACC1+15}], v[{b}:{b+3}], v[{b+8}:{b+11}], v[{ACC1}:{ACC1+15}]")
        k.e(f"v_mfma_f32_32x32x16_bf16 v[{ACC1}:{ACC1+15}], v[{b+4}:{b+7}], v[{b+8}:{b+11}], v[{ACC1}:{ACC1+15}]")
        if i < 8:
            k.e(f"v_mfma_f32_32x32x16_bf16 v[{ACC0}:{ACC0+15}], v[{b}:{b+3}], v[{b+12}:{b+15}], v[{ACC0}:{ACC0+15}]")
            k.e(f"v_mfma_f32_32x32x16_bf16 v[{ACC0}:{ACC0+15}], v[{b+4}:{b+7}], v[{b+12}:{b+15}], v[{ACC0}:{ACC0+15}]")
    k.e("s_waitcnt lgkmcnt(0)")
    reads(0)
    for s in range(32):
        if s + 1 < 32:
            n = reads(s + 1)
            k.e(f"s_waitcnt lgkmcnt({n})")
        else:
            k.e("s_waitcnt lgkmcnt(0)")
        mfmas(s)
    k.nop(16)
    k.e("v_mul_u32_u24 v6, 144, v4")
    k.e("v_add_u32 v6, v6, v7")
    k.e("v_mul_u32_u24 v8, 9216, v2")
    k.e("v_add_u32 v6, v6, v8")
    for t_, ACCx in ((0, ACC0), (1, ACC1)):
        for q in range(4):
            k.e(f"ds_write_b128 v6, v[{ACCx+4*q}:{ACCx+4*q+3}] offset:{ACCR + 144*32*t_ + 32*q}")
    k.e("s_waitcnt lgkmcnt(0)")
    k.e("s_barrier")
    k.e("v_lshrrev_b32 v6, 2, v0")
    k.e("v_mul_u32_u24 v6, 144, v6")
    k.e("v_and_b32 v7, 3, v0")
    k.e("v_lshlrev_b32 v7, 5, v7")
    k.e("v_add_u32 v6, v6, v7")
    for w_ in range(4):
        k.e(f"ds_read_b128 v[{96+8*w_}:{99+8*w_}], v6 offset:{ACCR + 9216*w_}")
        k.e(f"ds_read_b128 v[{100+8*w_}:{103+8*w_}], v6 offset:{ACCR + 9216*w_ + 16}")
    k.e("s_waitcnt lgkmcnt(0)")
    for i in range(8):
        k.e(f"v_add_f32 v{96+i}, v{96+i}, v{104+i}")
        k.e(f"v_add_f32 v{112+i}, v{112+i}, v{120+i}")
        k.e(f"v_add_f32 v{96+i}, v{96+i}, v{112+i}")
    k.e("v_lshlrev_b32 v164, 16, v164")
    for j in range(4):
        k.e(f"v_cvt_pk_bf16_f32 v16, v{96+2*j}, v{97+2*j}")
        k.e("v_lshlrev_b32 v17, 16, v16")
        k.e("v_and_b32 v18, 0xffff0000, v16")
        k.e(f"v_lshlrev_b32 v19, 16, v{160+j}")
        k.e(f"v_and_b32 v20, 0xffff0000, v{160+j}")
        k.e("v_mul_f32 v19, v19, v164")
        k.e("v_mul_f32 v20, v20, v164")
        k.e("v_cvt_pk_bf16_f32 v21, v19, v20")
        k.e("v_lshlrev_b32 v19, 16, v21")
        k.e("v_and_b32 v20, 0xffff0000, v21")
        k.e("v_add_f32 v17, v17, v19")
        k.e("v_add_f32 v18, v18, v20")
        k.e(f"v_cvt_pk_bf16_f32 v{24+j}, v17, v18")
    k.e("buffer_store_dwordx4 v[24:27], v165, s[52:55], s18 offen")
    k.lab(END)
    k.e("s_endpgm")
    return k, 168, 64
```

```python
import sys
sys.path.insert(0, 'dev')
from gen_common import *
import gen_k1

def build(path, which=None):
    kernels = []
    import gen_k0, gen_kc
    k, v, s = gen_k0.gen_k0(); kernels.append((k, v, s, (256,1,1), 256, gen_k0.LDS))
    try:
        k, v, s = gen_kc.gen_kc(); kernels.append((k, v, s, (640,1,1), 256, gen_kc.LDS))
        import gen_k3
        k, v, s = gen_k3.gen_k3(); kernels.append((k, v, s, (256,1,1), 256, gen_k3.LDS))
        import gen_gemm
        k, v, s = gen_gemm.gen_k4(); kernels.append((k, v, s, (240,1,1), 256, gen_gemm.LDS))
        k, v, s = gen_gemm.gen_k5(); kernels.append((k, v, s, (320,1,1), 256, gen_gemm.LDS))
    except ImportError as e:
        print('partial build:', e)
    if which is not None:
        kernels = kernels[:which]
    head = open('sequential_preLN__ssm_conv_s4d__mixer_token_mlp__prompt.s.ref').read().split('\n')
    head = [l for l in head if l.startswith(';') and '@launch' not in l]
    out = list(head)
    for (k, v, s, g, b, lds) in kernels:
        out.append(f"; @launch kernel={k.name} grid=({g[0]},{g[1]},{g[2]}) block=({b},1,1) lds={lds}")
    out.append('.amdgcn_target "amdgcn-amd-amdhsa--gfx950"')
    out.append('.text')
    descs = []
    for (k, v, s, g, b, lds) in kernels:
        body, desc = k.text(v, s)
        out.append(body); descs.append(desc)
    out.append('.section .rodata,"a"')
    for d in descs:
        out.append('.p2align 6'); out.append(d)
    open(path, 'w').write('\n'.join(out) + '\n')

if __name__ == '__main__':
    build(sys.argv[1] if len(sys.argv) > 1 else 'sequential_preLN__ssm_conv_s4d__mixer_token_mlp__prompt.s',
          int(sys.argv[2]) if len(sys.argv) > 2 else None)
```

```python
from gen_common import *

ACCR, PAR, KTL, UR = 0, 36864, 9216, 25856
LDS = 43008

def zero_accr(k):
    k.e("v_mov_b32 v36, 0"); k.e("v_mov_b32 v37, 0"); k.e("v_mov_b32 v38, 0"); k.e("v_mov_b32 v39, 0")
    k.e("v_lshlrev_b32 v47, 4, v0")
    k.e(f"ds_write_b128 v47, v[36:39] offset:{ACCR}")
    k.e(f"ds_write_b128 v47, v[36:39] offset:{ACCR+4096}")
    k.e("v_cmp_gt_u32 vcc, 64, v0")
    k.nop(2)
    k.e("s_and_saveexec_b64 s[44:45], vcc")
    k.e(f"ds_write_b128 v47, v[36:39] offset:{ACCR+8192}")
    k.e("s_mov_b64 exec, s[44:45]")

def gen_kc():
    k = Kern("kc_kgenconv_kernel")
    END = "L_kc_end"
    k.e("s_cmp_ge_u32 s2, 640")
    k.e(f"s_cbranch_scc1 {END}")
    k.e(f"s_load_dwordx2 s[4:5], s[0:1], {KA['lar']}")
    k.e(f"s_load_dwordx2 s[6:7], s[0:1], {KA['aim']}")
    k.e(f"s_load_dwordx2 s[20:21], s[0:1], {KA['cre']}")
    k.e(f"s_load_dwordx2 s[22:23], s[0:1], {KA['cim']}")
    k.e(f"s_load_dwordx2 s[24:25], s[0:1], {KA['ldt']}")
    k.e(f"s_load_dwordx2 s[26:27], s[0:1], {KA['ws']}")
    k.e(f"s_load_dwordx2 s[48:49], s[0:1], {KA['dsk']}")
    k.e("v_and_b32 v1, 63, v0")
    k.e("v_lshrrev_b32 v2, 6, v0")
    k.e("s_waitcnt lgkmcnt(0)")
    k.srd(8, 4, 5, 0, 640*192*2)
    k.srd(12, 6, 7, 0, 640*192*2)
    k.srd(28, 20, 21, 0, 640*192*2)
    k.srd(32, 22, 23, 0, 640*192*2)
    k.srd(36, 24, 25, 0, 640*2)
    k.srd(40, 26, 27, WS_UT, MAT_BYTES)
    k.srd(52, 26, 27, WS_SSM, MAT_BYTES)
    k.srd(56, 48, 49, 0, 1280)
    k.e("v_mul_u32_u24 v3, 48, v2")
    k.e("v_add_u32 v3, v3, v1")
    k.e("s_mul_i32 s16, s2, 384")
    k.e("v_lshlrev_b32 v4, 1, v3")
    k.e("buffer_load_ushort v10, v4, s[8:11], s16 offen")
    k.e("buffer_load_ushort v11, v4, s[12:15], s16 offen")
    k.e("buffer_load_ushort v12, v4, s[28:31], s16 offen")
    k.e("buffer_load_ushort v13, v4, s[32:35], s16 offen")
    k.e("s_lshl_b32 s17, s2, 1")
    k.e("v_mov_b32 v5, 0")
    k.e("buffer_load_ushort v14, v5, s[36:39], s17 offen")
    k.e("buffer_load_ushort v164, v5, s[56:59], s17 offen")
    k.e("s_lshl_b32 s18, s2, 4")
    k.e("v_mul_u32_u24 v165, 10240, v0")
    k.e("buffer_load_dwordx4 v[160:163], v165, s[40:43], s18 offen")
    k.e("s_waitcnt vmcnt(2)")
    for r in (10, 11, 12, 13, 14):
        k.e(f"v_lshlrev_b32 v{r}, 16, v{r}")
    k.e(f"v_mul_f32 v14, {flit(LOG2E)}, v14")
    k.e("v_exp_f32 v14, v14")
    k.e(f"v_mul_f32 v10, {flit(LOG2E)}, v10")
    k.e("v_exp_f32 v10, v10")
    k.nop(1)
    k.e("v_cvt_pk_bf16_f32 v14, v14, v14")
    k.e("v_lshlrev_b32 v14, 16, v14")
    k.e("v_cvt_pk_bf16_f32 v10, v10, v10")
    k.e("v_lshlrev_b32 v10, 16, v10")
    k.e("v_mul_f32 v10, v10, v14")
    k.e(f"v_mul_f32 v16, {flit(-LOG2E)}, v10")
    k.e("v_mul_f32 v11, v11, v14")
    k.e(f"v_mul_f32 v17, {flit(INV2PI)}, v11")
    k.e("v_mul_f32 v18, v12, v14")
    k.e("v_add_f32 v18, v18, v18")
    k.e("v_mul_f32 v19, v13, v14")
    k.e("v_add_f32 v19, v19, v19")
    k.e(f"v_mul_f32 v20, 0x45000000, v16")
    k.e("v_exp_f32 v20, v20")
    k.e(f"v_mul_f32 v21, 0x45000000, v17")
    k.e("v_fract_f32 v21, v21")
    k.e("v_sin_f32 v22, v21")
    k.e("v_cos_f32 v23, v21")
    k.nop(1)
    k.e("v_mul_f32 v24, v18, v23")
    k.e("v_fma_f32 v24, -v19, v22, v24")
    k.e("v_mul_f32 v24, v24, v20")
    k.e(f"v_mul_f32 v20, 0x44800000, v16")
    k.e("v_exp_f32 v20, v20")
    k.e(f"v_mul_f32 v21, 0x44800000, v17")
    k.e("v_fract_f32 v21, v21")
    k.e("v_sin_f32 v27, v21")
    k.e("v_cos_f32 v26, v21")
    k.nop(1)
    k.e("v_mul_f32 v26, v26, v20")
    k.e("v_mul_f32 v27, v27, v20")
    k.e("v_cmp_gt_u32 vcc, 48, v1")
    k.nop(2)
    k.e("v_cndmask_b32 v24, 0, v24, vcc")
    k.e("s_and_saveexec_b64 s[44:45], vcc")
    k.e("v_lshlrev_b32 v5, 5, v3")
    k.e(f"ds_write_b128 v5, v[16:19] offset:{PAR}")
    k.e(f"ds_write_b64 v5, v[26:27] offset:{PAR+16}")
    k.e("s_mov_b64 exec, s[44:45]")
    k.wave_sum(24, 46)
    k.e("s_waitcnt lgkmcnt(0)")
    k.e("s_barrier")
    k.e("v_and_b32 v4, 31, v1")
    k.e("v_lshrrev_b32 v5, 5, v1")
    k.e("v_cvt_f32_u32 v6, v4")
    k.e("v_lshlrev_b32 v7, 5, v4")
    k.e("v_cvt_f32_u32 v7, v7")
    k.e(f"v_add_f32 v8, 0x44800000, v7")
    k.e("v_mul_u32_u24 v9, 48, v2")
    k.e("v_lshlrev_b32 v10, 2, v5")
    k.e("v_add_u32 v9, v9, v10")
    k.e("v_lshlrev_b32 v9, 5, v9")
    ACC = [128, 144]
    for T_ in range(2):
        for r in range(16):
            k.e(f"v_mov_b32 v{ACC[T_]+r}, 0")
    class _P:
        def __add__(self, o): return o
    def PRb(jj): return (32 + 8*jj) if jj < 2 else (112 + 8*(jj-2))
    BH, BL, AH0, AL0, AH1, AL1 = 48, 52, 56, 60, 64, 68
    TB = 80
    def tj(jj, i):
        return TB + 8 * jj + i
    J = range(4)
    def cexp4(pf):
        for jj in J: k.e(f"v_mul_f32 v{tj(jj,0)}, v{PRb(jj)}, v{pf}")
        for jj in J: k.e(f"v_mul_f32 v{tj(jj,1)}, v{PRb(jj)+1}, v{pf}")
        for jj in J: k.e(f"v_exp_f32 v{tj(jj,0)}, v{tj(jj,0)}")
        for jj in J: k.e(f"v_fract_f32 v{tj(jj,1)}, v{tj(jj,1)}")
        for jj in J: k.e(f"v_sin_f32 v{tj(jj,2)}, v{tj(jj,1)}")
        for jj in J: k.e(f"v_cos_f32 v{tj(jj,3)}, v{tj(jj,1)}")
    def split4(DH, DL):
        for jj in J: k.e(f"v_cvt_pk_bf16_f32 v{DH+jj}, v{tj(jj,4)}, v{tj(jj,5)}")
        for jj in J: k.e(f"v_lshlrev_b32 v{tj(jj,6)}, 16, v{DH+jj}")
        for jj in J: k.e(f"v_and_b32 v{tj(jj,7)}, 0xffff0000, v{DH+jj}")
        for jj in J: k.e(f"v_sub_f32 v{tj(jj,6)}, v{tj(jj,4)}, v{tj(jj,6)}")
        for jj in J: k.e(f"v_sub_f32 v{tj(jj,7)}, v{tj(jj,5)}, v{tj(jj,7)}")
        for jj in J: k.e(f"v_cvt_pk_bf16_f32 v{DL+jj}, v{tj(jj,6)}, v{tj(jj,7)}")
    for kk in range(6):
        for jj in J:
            k.e(f"ds_read_b128 v[{PRb(jj)}:{PRb(jj)+3}], v9 offset:{PAR + (8*kk+jj)*32}")
            k.e(f"ds_read_b64 v[{PRb(jj)+4}:{PRb(jj)+5}], v9 offset:{PAR + (8*kk+jj)*32 + 16}")
        k.e("s_waitcnt lgkmcnt(0)")
        cexp4(6)
        for jj in J: k.e(f"v_mul_f32 v{tj(jj,4)}, v{PRb(jj)+2}, v{tj(jj,3)}")
        for jj in J: k.e(f"v_mul_f32 v{tj(jj,5)}, v{PRb(jj)+2}, v{tj(jj,2)}")
        for jj in J: k.e(f"v_fma_f32 v{tj(jj,4)}, -v{PRb(jj)+3}, v{tj(jj,2)}, v{tj(jj,4)}")
        for jj in J: k.e(f"v_fma_f32 v{tj(jj,5)}, v{PRb(jj)+3}, v{tj(jj,3)}, v{tj(jj,5)}")
        for jj in J: k.e(f"v_mul_f32 v{tj(jj,4)}, v{tj(jj,4)}, v{tj(jj,0)}")
        for jj in J: k.e(f"v_mul_f32 v{tj(jj,5)}, -v{tj(jj,5)}, v{tj(jj,0)}")
        split4(BH, BL)
        cexp4(7)
        for jj in J: k.e(f"v_mul_f32 v{tj(jj,4)}, v{tj(jj,3)}, v{tj(jj,0)}")
        for jj in J: k.e(f"v_mul_f32 v{tj(jj,5)}, v{tj(jj,2)}, v{tj(jj,0)}")
        split4(AH0, AL0)
        for jj in J: k.e(f"v_mul_f32 v{tj(jj,2)}, v{tj(jj,4)}, v{PRb(jj)+4}")
        for jj in J: k.e(f"v_mul_f32 v{tj(jj,3)}, v{tj(jj,4)}, v{PRb(jj)+5}")
        for jj in J: k.e(f"v_fma_f32 v{tj(jj,2)}, -v{tj(jj,5)}, v{PRb(jj)+5}, v{tj(jj,2)}")
        for jj in J: k.e(f"v_fma_f32 v{tj(jj,3)}, v{tj(jj,5)}, v{PRb(jj)+4}, v{tj(jj,3)}")
        for jj in J: k.e(f"v_mov_b32 v{tj(jj,4)}, v{tj(jj,2)}")
        for jj in J: k.e(f"v_mov_b32 v{tj(jj,5)}, v{tj(jj,3)}")
        split4(AH1, AL1)
        k.nop(2)
        for (T_, AH, AL) in ((0, AH0, AL0), (1, AH1, AL1)):
            a = ACC[T_]
            k.e(f"v_mfma_f32_32x32x16_bf16 v[{a}:{a+15}], v[{AH}:{AH+3}], v[{BH}:{BH+3}], v[{a}:{a+15}]")
            k.e(f"v_mfma_f32_32x32x16_bf16 v[{a}:{a+15}], v[{AH}:{AH+3}], v[{BL}:{BL+3}], v[{a}:{a+15}]")
            k.e(f"v_mfma_f32_32x32x16_bf16 v[{a}:{a+15}], v[{AL}:{AL+3}], v[{BH}:{BH+3}], v[{a}:{a+15}]")
    k.nop(16)
    k.e("v_lshlrev_b32 v10, 9, v5")
    k.e("v_lshlrev_b32 v9, 2, v4")
    k.e("v_add_u32 v9, v9, v10")
    k.e("v_mul_u32_u24 v10, 9216, v2")
    k.e("v_add_u32 v9, v9, v10")
    for T_ in range(2):
        for r in range(16):
            k.e(f"ds_write_b32 v9, v{ACC[T_]+r} offset:{ACCR + 128*(32*T_ + 8*(r>>2) + (r&3))}")
    k.e("v_mov_b32 v24, s46")
    k.e(f"ds_write_b32 v10, v24 offset:{ACCR+8192}")
    k.e("s_waitcnt lgkmcnt(0)")
    k.e("s_barrier")
    k.e("v_lshlrev_b32 v9, 5, v0")
    for w_ in range(4):
        k.e(f"ds_read_b128 v[{32+8*w_}:{35+8*w_}], v9 offset:{ACCR + 9216*w_}")
        k.e(f"ds_read_b128 v[{36+8*w_}:{39+8*w_}], v9 offset:{ACCR + 9216*w_ + 16}")
    k.e("v_mov_b32 v10, 0")
    for w_ in range(4):
        k.e(f"ds_read_b32 v{64+w_}, v10 offset:{ACCR + 9216*w_ + 8192}")
    k.e("s_waitcnt lgkmcnt(0)")
    for i in range(8):
        k.e(f"v_add_f32 v{32+i}, v{32+i}, v{40+i}")
        k.e(f"v_add_f32 v{48+i}, v{48+i}, v{56+i}")
        k.e(f"v_add_f32 v{32+i}, v{32+i}, v{48+i}")
    k.e(f"ds_write_b128 v9, v[32:35] offset:{ACCR}")
    k.e(f"ds_write_b128 v9, v[36:39] offset:{ACCR+16}")
    k.e("v_add_f32 v64, v64, v65")
    k.e("v_add_f32 v66, v66, v67")
    k.e("v_add_f32 v64, v64, v66")
    k.e(f"ds_write_b32 v10, v64 offset:{ACCR+8192}")
    k.e("s_waitcnt lgkmcnt(0)")
    k.e("s_barrier")
    for it in range(5):
        k.e(f"v_add_u32 v3, {256*it}, v0")
        k.e("v_lshlrev_b32 v4, 1, v3")
        for q in range(3):
            k.e(f"v_add_u32 v{10+q}, {q}, v4")
            k.e(f"v_subrev_u32 v{10+q}, 31, v{10+q}")
        for q in range(3):
            k.e(f"v_cmp_gt_u32 vcc, 2048, v{10+q}")
            k.nop(2)
            k.e(f"v_cndmask_b32 v{13+q}, 0, v{10+q}, vcc")
            k.e(f"v_cvt_f32_u32 v{13+q}, v{13+q}")
            k.e(f"v_cvt_pk_bf16_f32 v{13+q}, v{13+q}, v{13+q}")
            k.e(f"v_lshlrev_b32 v{13+q}, 16, v{13+q}")
            k.e(f"v_cvt_u32_f32 v{13+q}, v{13+q}")
            k.e(f"v_lshlrev_b32 v{13+q}, 2, v{13+q}")
            k.e(f"ds_read_b32 v{16+q}, v{13+q} offset:{ACCR}")
            k.e("s_waitcnt lgkmcnt(0)")
            k.e(f"v_cndmask_b32 v{16+q}, 0, v{16+q}, vcc")
        k.e("v_cvt_pk_bf16_f32 v20, v16, v17")
        k.e("v_cvt_pk_bf16_f32 v21, v17, v18")
        k.e("v_lshlrev_b32 v22, 16, v20")
        k.e("v_and_b32 v23, 0xffff0000, v20")
        k.e("v_and_b32 v24, 0xffff0000, v21")
        k.e("v_sub_f32 v22, v16, v22")
        k.e("v_sub_f32 v23, v17, v23")
        k.e("v_sub_f32 v24, v18, v24")
        k.e("v_cvt_pk_bf16_f32 v25, v22, v23")
        k.e("v_cvt_pk_bf16_f32 v26, v23, v24")
        k.e("v_lshlrev_b32 v4, 2, v3")
        if it == 4:
            k.e("v_cmp_gt_u32 vcc, 1040, v3")
            k.nop(2)
            k.e("s_and_saveexec_b64 s[44:45], vcc")
        k.e(f"ds_write_b32 v4, v20 offset:{KTL}")
        k.e(f"ds_write_b32 v4, v21 offset:{KTL+4160}")
        k.e(f"ds_write_b32 v4, v25 offset:{KTL+8320}")
        k.e(f"ds_write_b32 v4, v26 offset:{KTL+12480}")
        if it == 4:
            k.e("s_mov_b64 exec, s[44:45]")
    k.e("v_lshrrev_b32 v4, 2, v0")
    k.e("v_mul_u32_u24 v4, 80, v4")
    k.e("v_and_b32 v6, 3, v0")
    k.e("v_lshlrev_b32 v6, 4, v6")
    k.e("v_add_u32 v4, v4, v6")
    k.e("v_mov_b32 v36, 0"); k.e("v_mov_b32 v37, 0"); k.e("v_mov_b32 v38, 0"); k.e("v_mov_b32 v39, 0")
    k.e("v_cmp_gt_u32 vcc, 124, v0")
    k.nop(2)
    k.e("s_and_saveexec_b64 s[44:45], vcc")
    k.e(f"ds_write_b128 v4, v[36:39] offset:{UR + 64*80}")
    k.e("s_mov_b64 exec, s[44:45]")
    k.e("s_waitcnt vmcnt(0)")
    for j in range(4):
        k.e(f"v_alignbit_b32 v{40+j}, v{163-j}, v{163-j}, 16")
    k.e("v_lshlrev_b32 v4, 3, v0")
    k.e("v_sub_u32 v4, 2040, v4")
    k.e("v_lshrrev_b32 v6, 5, v4")
    k.e("v_mul_u32_u24 v6, 80, v6")
    k.e("v_and_b32 v4, 31, v4")
    k.e("v_lshlrev_b32 v4, 1, v4")
    k.e("v_add_u32 v4, v4, v6")
    k.e(f"ds_write_b128 v4, v[40:43] offset:{UR}")
    k.e("s_waitcnt lgkmcnt(0)")
    k.e("s_barrier")
    k.e("v_and_b32 v4, 31, v1")
    k.e("v_lshrrev_b32 v5, 5, v1")
    k.e("v_and_b32 v6, 1, v4")
    k.e("v_mul_u32_u24 v6, 4160, v6")
    k.e("v_and_b32 v7, 30, v4")
    k.e("v_lshlrev_b32 v7, 1, v7")
    k.e("v_add_u32 v6, v6, v7")
    k.e("v_lshlrev_b32 v7, 4, v5")
    k.e("v_add_u32 v6, v6, v7")
    k.e("v_lshlrev_b32 v8, 6, v2")
    k.e("v_add_u32 v6, v6, v8")
    k.e(f"v_add_u32 v6, {KTL}, v6")
    k.e("v_add_u32 v8, 8320, v6")
    k.e("v_sub_u32 v9, 31, v4")
    k.e("v_mul_u32_u24 v9, 80, v9")
    k.e("v_add_u32 v9, v9, v7")
    k.e("v_mul_u32_u24 v10, 80, v2")
    k.e("v_add_u32 v9, v9, v10")
    k.e(f"v_add_u32 v9, {UR}, v9")
    k.e("v_add_u32 v10, 2560, v9")
    ACC1, ACC0 = 64, 80
    for r in range(16):
        k.e(f"v_mov_b32 v{ACC1+r}, 0")
        k.e(f"v_mov_b32 v{ACC0+r}, 0")
    SETS = [96, 112]
    def reads(s):
        i, h = s >> 1, s & 1
        b = SETS[s & 1]
        k.e(f"ds_read2_b32 v[{b}:{b+1}], v6 offset0:{8*h} offset1:{8*h+1}")
        k.e(f"ds_read2_b32 v[{b+2}:{b+3}], v6 offset0:{8*h+2} offset1:{8*h+3}")
        k.e(f"ds_read2_b32 v[{b+4}:{b+5}], v8 offset0:{8*h} offset1:{8*h+1}")
        k.e(f"ds_read2_b32 v[{b+6}:{b+7}], v8 offset0:{8*h+2} offset1:{8*h+3}")
        k.e(f"ds_read_b128 v[{b+8}:{b+11}], v9 offset:{320*i + 32*h}")
        n = 5
        if i < 8:
            k.e(f"ds_read_b128 v[{b+12}:{b+15}], v10 offset:{320*i + 32*h}")
            n = 6
        if h == 1:
            k.e("v_add_u32 v6, 256, v6")
            k.e("v_add_u32 v8, 256, v8")
        return n
    def mfmas(s):
        i = s >> 1
        b = SETS[s & 1]
        k.e(f"v_mfma_f32_32x32x16_bf16 v[{ACC1}:{ACC1+15}], v[{b}:{b+3}], v[{b+8}:{b+11}], v[{ACC1}:{ACC1+15}]")
        k.e(f"v_mfma_f32_32x32x16_bf16 v[{ACC1}:{ACC1+15}], v[{b+4}:{b+7}], v[{b+8}:{b+11}], v[{ACC1}:{ACC1+15}]")
        if i < 8:
            k.e(f"v_mfma_f32_32x32x16_bf16 v[{ACC0}:{ACC0+15}], v[{b}:{b+3}], v[{b+12}:{b+15}], v[{ACC0}:{ACC0+15}]")
            k.e(f"v_mfma_f32_32x32x16_bf16 v[{ACC0}:{ACC0+15}], v[{b+4}:{b+7}], v[{b+12}:{b+15}], v[{ACC0}:{ACC0+15}]")
    k.e("s_waitcnt lgkmcnt(0)")
    reads(0)
    for s in range(32):
        if s + 1 < 32:
            n = reads(s + 1)
            k.e(f"s_waitcnt lgkmcnt({n})")
        else:
            k.e("s_waitcnt lgkmcnt(0)")
        mfmas(s)
    k.nop(16)
    k.e("s_barrier")
    k.e("v_mul_u32_u24 v6, 144, v4")
    k.e("v_add_u32 v6, v6, v7")
    k.e("v_mul_u32_u24 v8, 9216, v2")
    k.e("v_add_u32 v6, v6, v8")
    for t_, ACCx in ((0, ACC0), (1, ACC1)):
        for q in range(4):
            k.e(f"ds_write_b128 v6, v[{ACCx+4*q}:{ACCx+4*q+3}] offset:{ACCR + 144*32*t_ + 32*q}")
    k.e("s_waitcnt lgkmcnt(0)")
    k.e("s_barrier")
    k.e("v_lshrrev_b32 v6, 2, v0")
    k.e("v_mul_u32_u24 v6, 144, v6")
    k.e("v_and_b32 v7, 3, v0")
    k.e("v_lshlrev_b32 v7, 5, v7")
    k.e("v_add_u32 v6, v6, v7")
    for w_ in range(4):
        k.e(f"ds_read_b128 v[{96+8*w_}:{99+8*w_}], v6 offset:{ACCR + 9216*w_}")
        k.e(f"ds_read_b128 v[{100+8*w_}:{103+8*w_}], v6 offset:{ACCR + 9216*w_ + 16}")
    k.e("s_waitcnt lgkmcnt(0)")
    for i in range(8):
        k.e(f"v_add_f32 v{96+i}, v{96+i}, v{104+i}")
        k.e(f"v_add_f32 v{112+i}, v{112+i}, v{120+i}")
        k.e(f"v_add_f32 v{96+i}, v{96+i}, v{112+i}")
    k.e("v_lshlrev_b32 v164, 16, v164")
    for j in range(4):
        k.e(f"v_cvt_pk_bf16_f32 v16, v{96+2*j}, v{97+2*j}")
        k.e("v_lshlrev_b32 v17, 16, v16")
        k.e("v_and_b32 v18, 0xffff0000, v16")
        k.e(f"v_lshlrev_b32 v19, 16, v{160+j}")
        k.e(f"v_and_b32 v20, 0xffff0000, v{160+j}")
        k.e("v_mul_f32 v19, v19, v164")
        k.e("v_mul_f32 v20, v20, v164")
        k.e("v_cvt_pk_bf16_f32 v21, v19, v20")
        k.e("v_lshlrev_b32 v19, 16, v21")
        k.e("v_and_b32 v20, 0xffff0000, v21")
        k.e("v_add_f32 v17, v17, v19")
        k.e("v_add_f32 v18, v18, v20")
        k.e(f"v_cvt_pk_bf16_f32 v{24+j}, v17, v18")
    k.e("buffer_store_dwordx4 v[24:27], v165, s[52:55], s18 offen")
    k.lab(END)
    k.e("s_endpgm")
    return k, 168, 64
```
